```python
import torch

def _softmax(x, axis=-1):
    return torch.softmax(x, dim=axis)
def _gelu(x):
    return torch.nn.functional.gelu(x, approximate="tanh")
def _silu(x):
    return torch.nn.functional.silu(x)
def _sigmoid(x):
    return torch.sigmoid(x)
def _layernorm(x, axis=-1, eps=1e-5):
    m = x.mean(dim=axis, keepdim=True)
    v = x.var(dim=axis, keepdim=True, unbiased=False)
    return (x - m) / torch.sqrt(v + eps)
def _scatter_add(tgt, idx, src, axis=0):
    return tgt.clone().index_add_(axis, idx, src)
def _segment_sum(src, seg, n):
    out = torch.zeros((n,) + src.shape[1:], dtype=src.dtype)
    return out.index_add_(0, seg, src)
def _pad(x, pw):
    flat = tuple(v for pair in reversed(pw) for v in pair)
    return torch.nn.functional.pad(x, flat)

kernel_name = 'standalone__edge_featured_mpnn_gatedgcn__graph'

def setup_inputs():

    _w = (lambda a: (lambda t: t.to(torch.bfloat16) if t.is_floating_point() else t)(torch.as_tensor(a)))
    N, deg, D, De = 25000, 32, 64, max(0, 1)
    E = N * deg
    return {
        "x": _w((lambda *s: torch.randn(*s, dtype=torch.bfloat16) * 0.8)(N, D)),
        "e_attr": _w((lambda *s: torch.randn(*s, dtype=torch.bfloat16) * 0.8)(E, De)),
        "src": _w((lambda lo, hi, *s: torch.randint(lo, hi, s))(0, N, E).to(torch.int64)),
        "dst": _w((lambda lo, hi, *s: torch.randint(lo, hi, s))(0, N, E).to(torch.int64)),
        "w_a": _w((lambda *s: torch.randn(*s, dtype=torch.bfloat16) * 0.8)(D, D)),
        "w_b": _w((lambda *s: torch.randn(*s, dtype=torch.bfloat16) * 0.8)(D, D)),
        "w_c": _w((lambda *s: torch.randn(*s, dtype=torch.bfloat16) * 0.8)(De, D)),
        "w_u": _w((lambda *s: torch.randn(*s, dtype=torch.bfloat16) * 0.05)(D, D)),
        "w_v": _w((lambda *s: torch.randn(*s, dtype=torch.bfloat16) * 0.05)(D, D)),
    }

def reference(x, e_attr, src, dst, w_a, w_b, w_c, w_u, w_v):
    N, D = x.shape
    hv = x @ w_v
    g = x[dst] @ w_a + x[src] @ w_b + e_attr @ w_c
    eta = _sigmoid(g)
    denom = _segment_sum(eta, dst, N) + 1e-6
    eta_n = eta / denom[dst]
    agg = _segment_sum(eta_n * hv[src], dst, N)
    z = x @ w_u + agg
    relu_z = torch.where(z > 0, z, 0 * z)
    return x + relu_z
```

```python
import sys, struct

def f2u(x): return struct.unpack('<I', struct.pack('<f', x))[0]

N=25000; E=800000
NCH=250; CH=3200
TH=0x310000; DUMMY=25024; TROWS=25088
WS_REC=0x700000; WS_OFFS=0xB00000; WS_WF=0xB40000; WS_TS=0xC00000
CHB=16000
NLOG2E=f2u(-1.4426950408889634)
K60=f2u(2.0**-60)
EPS60=f2u(1e-6*2.0**60)

class Asm:
    def __init__(s): s.l=[]
    def __call__(s, t):
        for ln in t.strip('\n').split('\n'):
            s.l.append(ln if ln.strip().endswith(':') else '    '+ln.strip())
    def text(s): return '\n'.join(s.l)+'\n'

def vr(a,n): return f'v[{a}:{a+n-1}]'
def sr(a,n): return f's[{a}:{a+n-1}]'

def scan64(a, v):
    for d in ('row_shr:1 row_mask:0xf','row_shr:2 row_mask:0xf','row_shr:4 row_mask:0xf','row_shr:8 row_mask:0xf',
              'row_bcast:15 row_mask:0xa','row_bcast:31 row_mask:0xc'):
        a('s_nop 1')
        a(f'v_add_u32_dpp v{v}, v{v}, v{v} {d} bank_mask:0xf')

def stamp(a, opt, idx, ws, kern, stmp=90):
    if not opt.get('ts'): return
    a(f'''
    s_memrealtime s[{stmp}:{stmp+1}]
    s_waitcnt lgkmcnt(0)
    v_mov_b32 v126, s{stmp}
    v_mov_b32 v127, s{stmp+1}
    v_lshrrev_b32 v125, 6, v0
    v_lshlrev_b32 v125, 7, v125
    s_lshl_b32 s{stmp+2}, s2, 11
    s_add_u32 s{stmp+2}, s{stmp+2}, {WS_TS + kern*0x100000 + idx*8}
    v_add_u32 v125, s{stmp+2}, v125
    global_store_dwordx2 v125, v[126:127], {ws}
    ''')

K1_BIN0=0; K1_WF=250; K1_G0=251; K1_GRID=447
L1_HIST=16384; L1_OFFL=18432; L1_SIZE=18944

def k1(a, opt):
    st = opt.get('k1store','')
    a(f'''
k1_kernel:
    s_cmp_ge_u32 s2, {K1_GRID}
    s_cbranch_scc1 k1_end
    s_cmp_ge_u32 s2, {K1_G0}
    s_cbranch_scc1 k1_gemm
    s_cmp_eq_u32 s2, {K1_WF}
    s_cbranch_scc1 k1_wf
    s_load_dwordx4 s[4:7], s[0:1], 8
    s_load_dwordx2 s[8:9], s[0:1], 24         ; dst
    s_load_dwordx2 s[10:11], s[0:1], 88       ; ws
    v_lshlrev_b32 v1, 5, v0
    s_mul_i32 s12, s2, {CH*4}
    v_add_u32 v1, s12, v1
    v_lshrrev_b32 v2, 1, v1
    v_lshlrev_b32 v3, 2, v0
    v_mov_b32 v4, 0
    v_mov_b32 v5, 1
    v_cmp_gt_u32 vcc, 400, v0
    s_mov_b64 s[14:15], vcc
    s_waitcnt lgkmcnt(0)
    ''')
    stamp(a,opt,0,'s[10:11]',0)
    a(f'''
    s_mov_b64 exec, s[14:15]
    s_cbranch_execz k1_b1
    global_load_dwordx4 v[8:11], v1, s[8:9]
    global_load_dwordx4 v[12:15], v1, s[8:9] offset:16
    global_load_dwordx4 v[16:19], v1, s[6:7]
    global_load_dwordx4 v[20:23], v1, s[6:7] offset:16
    global_load_dwordx4 v[24:27], v2, s[4:5]
k1_b1:
    s_mov_b64 exec, -1
    ds_write_b32 v3, v4 offset:{L1_HIST}
    s_mov_b32 s16, 0xffff0000
    s_waitcnt lgkmcnt(0)
    s_barrier
    s_mov_b64 exec, s[14:15]
    s_cbranch_execz k1_b2
    s_waitcnt vmcnt(3)
    ''')
    for i in range(8):
        a(f'''
        v_and_b32 v{28+i}, 127, v{8+i}
        v_lshlrev_b32 v{28+i}, 2, v{28+i}
        ds_add_rtn_u32 v{36+i}, v{28+i}, v5 offset:{L1_HIST}
        ''')
    for i in range(8):
        a(f'''
        v_lshrrev_b32 v{8+i}, 7, v{8+i}
        v_add_u32 v{8+i}, 1, v{8+i}
        ''')
    a('s_waitcnt vmcnt(0)')
    for i in range(8):
        if i%2==0: a(f'v_lshl_or_b32 v{16+i}, v{24+i//2}, 16, v{16+i}')
        else:      a(f'v_and_or_b32 v{16+i}, v{24+i//2}, s16, v{16+i}')
    a(f'''
k1_b2:
    s_mov_b64 exec, -1
    v_and_b32 v6, 63, v0
    v_lshlrev_b32 v6, 3, v6
    s_waitcnt lgkmcnt(0)
    ''')
    stamp(a,opt,1,'s[10:11]',0)
    a(f'''
    s_barrier
    ds_read_b64 v[44:45], v6 offset:{L1_HIST}
    s_waitcnt lgkmcnt(0)
    v_add_u32 v46, v44, v45
    v_mov_b32 v47, v46
    ''')
    scan64(a,47)
    a(f'''
    v_sub_u32 v48, v47, v46
    v_add_u32 v49, v48, v44
    ds_write_b64 v6, v[48:49] offset:{L1_OFFL}
    v_cmp_gt_u32 vcc, 64, v0
    s_cbranch_vccz k1_b3
    v_lshl_or_b32 v50, v44, 16, v48
    v_lshl_or_b32 v51, v45, 16, v49
    s_lshl_b32 s12, s2, 9
    s_add_u32 s12, s12, {WS_OFFS}
    v_add_u32 v52, s12, v6
    global_store_dwordx2 v52, v[50:51], s[10:11] {st}
k1_b3:
    s_waitcnt lgkmcnt(0)
    s_mov_b64 exec, s[14:15]
    s_cbranch_execz k1_b4
    ''')
    for i in range(8): a(f'ds_read_b32 v{28+i}, v{28+i} offset:{L1_OFFL}')
    for i in range(8):
        a(f'''
        s_waitcnt lgkmcnt({min(15,7-i+2*i)})
        v_add_u32 v{28+i}, v{28+i}, v{36+i}
        v_lshlrev_b32 v{36+i}, 2, v{28+i}
        ds_write_b8 v{28+i}, v{8+i} offset:{CH*4}
        ds_write_b32 v{36+i}, v{16+i}
        ''')
    a(f'''
k1_b4:
    s_mov_b64 exec, -1
    v_lshlrev_b32 v1, 4, v0
    s_mul_i32 s12, s2, {CHB}
    s_add_u32 s12, s12, {WS_REC}
    v_add_u32 v2, s12, v1
    v_add_u32 v3, 8192, v2
    v_cmp_gt_u32 vcc, {CHB//16-512}, v0
    s_waitcnt lgkmcnt(0)
    s_barrier
    ds_read_b128 v[8:11], v1
    ds_read_b128 v[12:15], v1 offset:8192
    s_waitcnt lgkmcnt(1)
    global_store_dwordx4 v2, v[8:11], s[10:11] {st}
    s_mov_b64 exec, vcc
    s_waitcnt lgkmcnt(0)
    global_store_dwordx4 v3, v[12:15], s[10:11] {st}
    ''')
    if opt.get('ts'):
        a('s_mov_b64 exec, -1')
        stamp(a,opt,2,'s[10:11]',0)
        a('s_waitcnt vmcnt(0)')
        stamp(a,opt,3,'s[10:11]',0)
    a('s_endpgm')

    a(f'''
k1_wf:
    s_load_dwordx2 s[4:5], s[0:1], 32         ; w_a
    s_load_dwordx2 s[6:7], s[0:1], 56         ; w_u
    s_load_dwordx2 s[10:11], s[0:1], 88       ; ws
    v_lshrrev_b32 v1, 6, v0
    v_and_b32 v2, 63, v0                      ; lane
    v_readfirstlane_b32 s12, v1
    v_and_b32 v3, 31, v0
    v_lshrrev_b32 v4, 5, v2                   ; kh
    v_lshlrev_b32 v3, 1, v3
    v_lshl_add_u32 v3, v4, 10, v3             ; kh*8*128 + n*2
    s_bfe_u32 s13, s12, 0x10001
    s_lshl_b32 s13, s13, 6
    s_and_b32 s14, s12, 1
    s_lshl_b32 s14, s14, 12                   ; 2*(w&1)*2048
    s_add_u32 s13, s13, s14
    v_add_u32 v3, s13, v3
    s_waitcnt lgkmcnt(0)
    s_cmp_ge_u32 s12, 4
    s_cselect_b32 s4, s6, s4
    s_cselect_b32 s5, s7, s5
    ''')
    for q in range(2):
        for j in range(8):
            a(f'global_load_ushort v{8+q*8+j}, v3, s[4:5] offset:{q*2048+j*128}')
    a(f'''
    s_lshl_b32 s13, s12, 11
    s_add_u32 s13, s13, {WS_WF}
    v_lshlrev_b32 v5, 4, v2
    v_add_u32 v5, s13, v5
    s_waitcnt vmcnt(0)
    ''')
    for q in range(2):
        for i in range(4):
            a(f'v_lshl_or_b32 v{24+q*4+i}, v{8+q*8+2*i+1}, 16, v{8+q*8+2*i}')
    a(f'''
    global_store_dwordx4 v5, v[24:27], s[10:11] {st}
    global_store_dwordx4 v5, v[28:31], s[10:11] offset:1024 {st}
    s_cmp_lg_u32 s12, 0
    s_cbranch_scc1 k1_end
    v_and_b32 v6, 31, v0
    v_lshlrev_b32 v6, 2, v6
    s_mov_b32 s13, {TH}
    v_mad_u32_u24 v6, v4, s13, v6
    v_add_u32 v6, {DUMMY*128}, v6
    v_mov_b32 v7, 0x7c00
    global_store_dword v6, v7, s[10:11] {st}
    s_endpgm
    ''')

    a(f'''
k1_gemm:
    s_load_dwordx2 s[4:5], s[0:1], 0          ; x
    s_load_dwordx2 s[12:13], s[0:1], 40       ; w_b
    s_load_dwordx2 s[14:15], s[0:1], 64       ; w_v
    s_load_dwordx2 s[10:11], s[0:1], 88       ; ws
    v_lshrrev_b32 v1, 6, v0
    v_and_b32 v2, 63, v0                      ; lane
    v_readfirstlane_b32 s16, v1               ; wave
    s_sub_u32 s17, s2, {K1_G0}
    s_lshl_b32 s17, s17, 2
    s_lshr_b32 s18, s16, 1
    s_add_u32 s17, s17, s18                   ; tile
    s_and_b32 s18, s16, 1                     ; half
    s_cmp_ge_u32 s17, 782
    s_cbranch_scc1 k1_end
    v_and_b32 v3, 31, v2
    v_lshrrev_b32 v4, 5, v2                   ; kh
    s_lshl_b32 s19, s17, 12                   ; tile*32*128
    v_lshlrev_b32 v5, 7, v3
    v_lshl_add_u32 v5, v4, 4, v5
    v_add_u32 v5, s19, v5                     ; x offset
    v_and_b32 v6, 15, v2
    v_bfe_u32 v7, v2, 4, 1                    ; mat
    v_lshlrev_b32 v8, 2, v6
    v_lshl_add_u32 v8, v4, 10, v8
    s_lshl_b32 s20, s18, 6
    s_add_u32 s20, s20, 4096
    v_add_u32 v8, s20, v8
    v_cmp_eq_u32 vcc, 1, v7
    s_mov_b32 s6, {N*128}
    s_mov_b32 s7, 0x20000
    s_waitcnt lgkmcnt(0)
    ''')
    stamp(a,opt,0,'s[10:11]',0)
    for s in range(4):
        a(f'buffer_load_dwordx4 {vr(16+4*s,4)}, v5, s[4:7], 0 offen offset:{32*s}')
    a(f'''
    v_mov_b32 v10, s12
    v_mov_b32 v11, s14
    v_cndmask_b32 v10, v10, v11, vcc
    v_mov_b32 v11, s13
    v_mov_b32 v12, s15
    v_cndmask_b32 v11, v11, v12, vcc
    v_add_co_u32 v10, vcc, v10, v8
    s_nop 1
    v_addc_co_u32 v11, vcc, 0, v11, vcc
    ''')
    for s in range(4):
        for j in range(8):
            a(f'global_load_dword v{40+8*s+j}, v[10:11], off offset:{s*2048+j*128-4096}')
    a(f'''
    s_mov_b32 s21, 0x05040100
    s_mov_b32 s22, 0x07060302
    s_mov_b32 s23, {NLOG2E}
    s_mov_b32 s24, 0x8000
    s_mov_b32 s25, 0xffff0000
    s_mul_i32 s26, s18, {TH}
    s_add_u32 s26, s26, s19
    v_lshl_add_u32 v9, v6, 1, v7
    v_lshlrev_b32 v9, 2, v9
    v_lshl_add_u32 v9, v4, 9, v9
    v_add_u32 v9, s26, v9
    v_mov_b32 v12, 0
    v_mov_b32 v13, 0
    ''')
    DE=72; DO=88
    for s in range(4):
        a(f's_waitcnt vmcnt({24-8*s})')
        r=40+8*s; f=32+8*s
        for i in range(4): a(f'v_perm_b32 v{f+i}, v{r+2*i+1}, v{r+2*i}, s21')
        for i in range(4): a(f'v_perm_b32 v{f+4+i}, v{r+2*i+1}, v{r+2*i}, s22')
        c1 = '0' if s==0 else vr(DE,16)
        c2 = '0' if s==0 else vr(DO,16)
        a(f'v_mfma_f32_32x32x16_bf16 {vr(DE,16)}, {vr(16+4*s,4)}, {vr(f,4)}, {c1}')
        a('s_nop 0')
        a(f'v_mfma_f32_32x32x16_bf16 {vr(DO,16)}, {vr(16+4*s,4)}, {vr(f+4,4)}, {c2}')
    a('s_nop 11')
    stamp(a,opt,1,'s[10:11]',0)
    for r in range(16): a(f'v_permlane16_swap_b32 v{DE+r}, v{DO+r}')
    for r in range(16): a(f'v_mul_f32 v{DE+r}, s23, v{DE+r}')
    for r in range(0,16,2):
        a(f'v_max3_f32 v12, |v{DE+r}|, |v{DE+r+1}|, v12')
        a(f'v_max3_f32 v13, |v{DO+r}|, |v{DO+r+1}|, v13')
    a(f'''
    v_cmp_lt_f32 vcc, {hex(f2u(60000.0))}, v12
    s_cbranch_vccnz k1_bad
    v_cmp_lt_f32 vcc, {hex(f2u(2.0**40))}, v13
    s_cbranch_vccnz k1_bad
    v_cmp_le_f32 vcc, {hex(f2u(2.0**-30))}, v13
    s_cbranch_vccnz k1_good
    v_cmp_neq_f32 vcc, 0, v13
    s_cbranch_vccnz k1_bad
k1_good:
    ''')
    for r in range(16):
        a(f'''
        v_cvt_f16_f32 v{DE+r}, v{DE+r}
        v_sad_u32 v{DO+r}, v{DO+r}, v{DE+r}, s24
        v_and_or_b32 v{DO+r}, v{DO+r}, s25, v{DE+r}
        global_store_dword v9, v{DO+r}, s[10:11] offset:{((r&3)+8*(r>>2))*128} {st}
        ''')
    if opt.get('ts'):
        stamp(a,opt,2,'s[10:11]',0)
        a('s_waitcnt vmcnt(0)')
        stamp(a,opt,3,'s[10:11]',0)
    a('''
    s_endpgm
k1_bad:
    v_mov_b32 v12, 0x7e00
    ''')
    for r in range(16):
        a(f'global_store_dword v9, v12, s[10:11] offset:{((r&3)+8*(r>>2))*128} {st}')
    a('''
k1_end:
    s_endpgm
    ''')

CAP=80; RS=(CAP+1)*4
L_A=65536; L_U=L_A+224*128; L_HIST=L_U+224*128; L_CH=L_HIST+1024; L_PERM=L_CH+256; L_FLAG=L_PERM+1024; L2_SIZE=L_FLAG+64
sX=12; sO=16; sOF=20; sR=24; sT=28
sBK=32; sH=33; sW=34; sK=36; sE=38

def cstage(a, rs, modeB, e_off):
    G=60; P=68; S=72; W=76; WC=4; EA=8; AR=12; D=16; NN=20
    for c in range(4): a(f'v_fma_mix_f32 v{G+c}, v48, v{WC+c}, v{rs+c} op_sel_hi:[0,0,1]')
    for c in range(4): a(f'v_fma_mix_f32 v{G+4+c}, v49, v{WC+c}, v{rs+4+c} op_sel_hi:[0,0,1]')
    a(f'ds_read_u16_d16_hi v48, v54 offset:{e_off+2}')
    a(f'ds_read_u16_d16_hi v49, v54 offset:{e_off+6}')
    if modeB:
        for q in range(4): a(f'v_pk_add_f32 {vr(G+2*q,2)}, {vr(G+2*q,2)}, {vr(AR+2*(q&1),2)}')
    for c in (0,1,4,5,2,3,6,7): a(f'v_exp_f32 v{G+c}, v{G+c}')
    for q in (0,2,1,3):
        m = sr(sK,2) if modeB else vr(EA+2*(q&1),2)
        a(f'v_pk_fma_f32 {vr(G+2*q,2)}, {vr(G+2*q,2)}, {m}, {sr(sK,2)} clamp')
    a(f'v_pk_mul_f32 {vr(P,2)}, {vr(G,2)}, {vr(G+4,2)}')
    a(f'v_pk_mul_f32 {vr(P+2,2)}, {vr(G+2,2)}, {vr(G+6,2)}')
    a(f'v_pk_mul_f32 {vr(W,2)}, {vr(G+4,2)}, {vr(rs,2)}')
    a(f'v_rcp_f32 v{P}, v{P}')
    a(f'v_rcp_f32 v{P+1}, v{P+1}')
    a(f'v_pk_mul_f32 {vr(W+2,2)}, {vr(G+6,2)}, {vr(rs+2,2)}')
    a(f'v_rcp_f32 v{P+2}, v{P+2}')
    a(f'v_rcp_f32 v{P+3}, v{P+3}')
    a(f'v_pk_add_f32 {vr(S,2)}, {vr(G,2)}, {vr(G+4,2)}')
    a(f'v_pk_add_f32 {vr(S+2,2)}, {vr(G+2,2)}, {vr(G+6,2)}')
    a(f'v_pk_fma_f32 {vr(W,2)}, {vr(G,2)}, {vr(rs+4,2)}, {vr(W,2)}')
    a(f'v_pk_fma_f32 {vr(W+2,2)}, {vr(G+2,2)}, {vr(rs+6,2)}, {vr(W+2,2)}')
    a(f'v_pk_fma_f32 {vr(D,2)}, {vr(S,2)}, {vr(P,2)}, {vr(D,2)}')
    a(f'v_pk_fma_f32 {vr(D+2,2)}, {vr(S+2,2)}, {vr(P+2,2)}, {vr(D+2,2)}')
    a(f'v_pk_fma_f32 {vr(NN,2)}, {vr(W,2)}, {vr(P,2)}, {vr(NN,2)}')
    a(f'v_pk_fma_f32 {vr(NN+2,2)}, {vr(W+2,2)}, {vr(P+2,2)}, {vr(NN+2,2)}')

def mainloop(a, modeB):
    t = 'B' if modeB else 'A'
    a(f'k2_loop{t}:')
    for u in range(3):
        ld = 24+8*((u+2)%3); cs = 24+8*u
        a(f'''
        s_cmp_gt_u32 s40, 2
        s_cselect_b32 s{sT+2}, s41, 0
        s_waitcnt lgkmcnt(0)
        buffer_load_dwordx4 {vr(ld,4)}, v[50:51], {sr(sT,4)}, 0 idxen offen
        buffer_load_dwordx4 {vr(ld+4,4)}, v[52:53], {sr(sT,4)}, 0 idxen offen
        ds_read_u16 v50, v54 offset:{(u+3)*8}
        ds_read_u16 v52, v54 offset:{(u+3)*8+4}
        s_waitcnt vmcnt(4)
        ''')
        cstage(a, cs, modeB, (u+1)*8)
        if u==2: a('v_add_u32 v54, 24, v54')
        a('s_sub_u32 s40, s40, 1')
        a('s_cmp_eq_u32 s40, 0')
        if u<2: a('s_cbranch_scc1 k2_fin')
        else:
            a(f's_cbranch_scc0 k2_loop{t}')
            a('s_branch k2_fin')

def k2(a, opt):
    warmA = opt.get('warmA', 4)
    a(f'''
k2_kernel:
    s_cmp_ge_u32 s2, 256
    s_cbranch_scc1 k2_end
    s_load_dwordx2 s[{sX}:{sX+1}], s[0:1], 0          ; x
    s_load_dwordx2 s[6:7], s[0:1], 48                 ; w_c
    s_load_dwordx2 s[{sO}:{sO+1}], s[0:1], 72         ; out
    s_load_dwordx2 s[10:11], s[0:1], 88               ; ws
    v_lshrrev_b32 v2, 6, v0
    v_and_b32 v1, 63, v0                              ; lane
    v_readfirstlane_b32 s{sW}, v2                     ; wave
    s_and_b32 s{sBK}, s2, 3
    s_lshl_b32 s{sBK}, s{sBK}, 5
    s_lshr_b32 s3, s2, 3
    s_add_u32 s{sBK}, s{sBK}, s3                      ; bucket
    s_bfe_u32 s{sH}, s2, 0x10002                      ; half
    v_lshrrev_b32 v3, 5, v1                           ; lane>>5
    v_and_b32 v2, 31, v1                              ; lane&31
    s_lshl_b32 s4, s{sW}, 13
    s_lshl_b32 s5, s{sBK}, 2
    s_add_u32 s4, s4, s5
    v_lshlrev_b32 v4, 9, v3
    v_add_u32 v4, s4, v4
    s_mov_b32 s{sX+2}, {N*128}
    s_mov_b32 s{sX+3}, 0x20000
    s_mov_b32 s{sO+2}, {N*128}
    s_mov_b32 s{sO+3}, 0x20000
    s_mov_b32 s{sOF+2}, {NCH*512}
    s_mov_b32 s{sOF+3}, 0x20000
    s_mov_b32 s{sR+2}, {NCH*CHB}
    s_mov_b32 s{sR+3}, 0x20000
    s_mov_b32 s41, {TROWS}
    s_mov_b32 s{sT+2}, {TROWS}
    s_mov_b32 s{sT+3}, 0x20000
    s_mov_b32 s{sK}, {K60}
    s_mov_b32 s{sK+1}, {K60}
    s_mov_b32 s{sE}, {EPS60}
    s_mov_b32 s{sE+1}, {EPS60}
    v_add_u32 v5, 0x1000, v4
    s_mul_i32 s8, s{sH}, {TH}
    s_waitcnt lgkmcnt(0)
    s_add_u32 s{sOF}, s10, {WS_OFFS}
    s_addc_u32 s{sOF+1}, s11, 0
    ''')
    for it in range(8):
        a(f'buffer_load_dword v{8+it}, v{4 if it<4 else 5}, {sr(sOF,4)}, 0 offen offset:{(it&3)*1024}')
    stamp(a,opt,0,'s[10:11]',1)
    nts = 1 if opt.get('ts') else 0
    a(f'''
    s_add_u32 s{sR}, s10, {WS_REC}
    s_addc_u32 s{sR+1}, s11, 0
    s_add_u32 s{sT}, s10, s8
    s_addc_u32 s{sT+1}, s11, 0
    s_mov_b32 s42, s{sT}
    s_mov_b32 s43, s{sT+1}
    s_or_b32 s{sT+1}, s{sT+1}, 0x800000               ; stride 128
    s_lshr_b32 s8, s{sW}, 1                           ; tile
    s_and_b32 s9, s{sW}, 1                            ; mat
    s_lshl_b32 s44, s8, 5
    v_add_u32 v5, s44, v2                             ; dl
    v_lshlrev_b32 v5, 7, v5
    v_add_u32 v5, s{sBK}, v5                          ; node
    v_lshlrev_b32 v5, 7, v5
    v_lshl_add_u32 v5, v3, 4, v5
    s_lshl_b32 s44, s9, 1
    s_add_u32 s44, s44, s{sH}
    s_lshl_b32 s44, s44, 12
    s_add_u32 s44, s44, {WS_WF}
    v_lshlrev_b32 v6, 4, v1
    v_add_u32 v6, s44, v6
    ''')
    for s in range(4): a(f'buffer_load_dwordx4 {vr(64+4*s,4)}, v5, {sr(sX,4)}, 0 offen offset:{32*s}')
    for s in range(4): a(f'global_load_dwordx4 {vr(80+4*s,4)}, v6, s[10:11] offset:{1024*s}')
    a(f'''
    v_and_b32 v7, 7, v1
    v_lshlrev_b32 v7, 3, v7
    s_lshl_b32 s44, s{sH}, 6
    v_add_u32 v7, s44, v7                             ; 64*half + 8*j
    global_load_dwordx2 v[112:113], v7, s[6:7]
    s_mul_i32 s44, s3, 784
    v_add_u32 v115, s44, v0
    v_lshlrev_b32 v115, 7, v115
    v_cmp_gt_u32 vcc, 784, v0
    s_mov_b64 s[46:47], vcc
    s_cmp_ge_u32 s{sW}, {warmA}
    s_cbranch_scc1 k2_w1
    global_load_dword v114, v115, s[42:43]
k2_w1:
    v_mov_b32 v116, {DUMMY}
    v_mov_b32 v117, {DUMMY}
    v_mov_b32 v118, {DUMMY}
    v_mov_b32 v119, {DUMMY}
    v_lshlrev_b32 v120, 4, v0
    ds_write_b128 v120, v[116:119]
    ds_write_b128 v120, v[116:119] offset:16384
    ds_write_b128 v120, v[116:119] offset:32768
    ds_write_b128 v120, v[116:119] offset:49152
    v_lshlrev_b32 v121, 2, v0
    v_add_u32 v121, {L_HIST}, v121
    v_mov_b32 v122, 0
    v_cmp_gt_u32 vcc, {(L2_SIZE-L_HIST)//4}, v0
    s_and_saveexec_b64 s[48:49], vcc
    ds_write_b32 v121, v122
    s_mov_b64 exec, -1
    s_lshl_b32 s44, s{sW}, 4
    v_add_u32 v123, s44, v3
    s_movk_i32 s45, {CHB}
    v_mul_u32_u24 v123, s45, v123
    v_mov_b32 v124, 0x80000000
    s_mov_b32 s50, 0
    s_waitcnt vmcnt(9)
    ''')
    stamp(a,opt,1,'s[10:11]',1)
    for it in range(8):
        e=8+it
        a(f'''
        v_lshrrev_b32 v{48+it}, 16, v{e}              ; count
        v_and_b32 v{e}, 0xffff, v{e}
        v_add_u32 v{e}, v{e}, v2                      ; start + i
        v_cmp_lt_u32 vcc, v2, v{48+it}
        v_add_u32 v{56+it}, v123, v{e}
        v_lshl_add_u32 v{e}, v{e}, 2, v123
        v_cndmask_b32 v{24+it}, v124, v{56+it}, vcc
        v_cndmask_b32 v{16+it}, v124, v{e}, vcc
        s_mov_b32 s44, {it*2*CHB+CH*4}
        s_mov_b32 s45, {it*2*CHB}
        buffer_load_ubyte v{24+it}, v{24+it}, {sr(sR,4)}, s44 offen
        buffer_load_dword v{16+it}, v{16+it}, {sr(sR,4)}, s45 offen
        ''')
    a('v_add_u32 v125, 32, v2')
    for it in range(8):
        e=8+it
        a(f'''
        v_mov_b32 v{40+it}, 0
        v_cmp_lt_u32 vcc, v125, v{48+it}
        s_cbranch_vccz k2_r2_{it}
        s_mov_b32 s44, {it*2*CHB+CH*4}
        s_mov_b32 s45, {it*2*CHB}
        v_cndmask_b32 v{40+it}, v124, v{56+it}, vcc
        v_cndmask_b32 v{32+it}, v124, v{e}, vcc
        buffer_load_ubyte v{40+it}, v{40+it}, {sr(sR,4)}, s44 offen offset:32
        buffer_load_dword v{32+it}, v{32+it}, {sr(sR,4)}, s45 offen offset:128
        v_cmp_lt_u32 vcc, 64, v{48+it}
        s_cbranch_vccz k2_r2_{it}
        s_mov_b32 s50, 1
k2_r2_{it}:
        ''')
    a(f'''
    s_waitcnt vmcnt(16)
    s_mov_b32 s55, 0
    s_cmp_lt_u32 s{sW}, {warmA}
    s_cbranch_scc1 k2_w2
    s_mov_b64 exec, s[46:47]
    s_cbranch_execz k2_w2
    global_load_dword v114, v115, s[42:43]
    s_mov_b32 s55, 1
k2_w2:
    s_mov_b64 exec, -1
    s_mov_b32 s51, 0
    s_cmp_ge_u32 s{sW}, 14
    s_cbranch_scc1 k2_au_done
    ''')
    for s in range(4):
        c = '0' if s==0 else vr(96,16)
        a(f'v_mfma_f32_32x32x16_bf16 {vr(96,16)}, {vr(64+4*s,4)}, {vr(80+4*s,4)}, {c}')
    a(f'''
    s_lshl_b32 s44, s8, 12
    s_mul_i32 s45, s9, {L_U-L_A}
    s_add_u32 s44, s44, s45
    s_add_u32 s44, s44, {L_A}
    v_lshlrev_b32 v64, 2, v2
    v_lshl_add_u32 v64, v3, 9, v64
    v_add_u32 v64, s44, v64
    s_mov_b32 s45, {NLOG2E}
    s_cmp_eq_u32 s9, 0
    s_nop 5
    s_cbranch_scc1 k2_au_a
    ''')
    for r in range(16): a(f'ds_write_b32 v64, v{96+r} offset:{((r&3)+8*(r>>2))*128}')
    a('''
    s_branch k2_au_done
k2_au_a:
    v_mov_b32 v65, 0
    ''')
    for r in range(16): a(f'v_mul_f32 v{96+r}, s45, v{96+r}')
    for r in range(0,16,2): a(f'v_max3_f32 v65, |v{96+r}|, |v{96+r+1}|, v65')
    for r in range(16): a(f'v_add_f32 v{66+r}, {hex(f2u(-60.0))}, v{96+r}')
    for r in range(16): a(f'v_exp_f32 v{66+r}, v{66+r}')
    a(f'v_cmp_lt_f32 vcc, {hex(f2u(60.0))}, v65')
    for r in range(16): a(f'ds_write_b32 v64, v{66+r} offset:{((r&3)+8*(r>>2))*128}')
    a(f'''
    s_cmp_lg_u64 vcc, 0
    s_cselect_b32 s51, 1, 0
k2_au_done:
    v_mov_b32 v5, 1
    s_movk_i32 s45, {RS}
    s_waitcnt lgkmcnt(0)
    s_barrier
    s_waitcnt vmcnt(1)
    s_cmp_lg_u32 s55, 0
    s_cbranch_scc1 k2_w3
    s_waitcnt vmcnt(0)
k2_w3:
    ''')
    stamp(a,opt,2,'s[10:11]',1)
    a(f'v_mov_b32 v6, {L_HIST-4}')
    for rnd in range(2):
        for it in range(8):
            d=(24 if rnd==0 else 40)+it; rk=(48 if rnd==0 else 56)+it
            a(f'''
            v_cmp_ne_u32 vcc, 0, v{d}
            v_lshl_add_u32 v{rk}, v{d}, 2, v6
            s_mov_b64 exec, vcc
            ds_add_rtn_u32 v{rk}, v{rk}, v5
            s_mov_b64 exec, -1
            ''')
    a('s_waitcnt lgkmcnt(8)')
    for rnd in range(2):
        if rnd==1: a('s_waitcnt lgkmcnt(8)')
        for it in range(8):
            d=(24 if rnd==0 else 40)+it; rk=(48 if rnd==0 else 56)+it; rc=(16 if rnd==0 else 32)+it
            a(f'''
            v_cmp_ne_u32 vcc, 0, v{d}
            v_min_u32 v{rk}, {CAP}, v{rk}
            v_lshlrev_b32 v{rk}, 2, v{rk}
            v_mad_u32_u24 v{rk}, v{d}, s45, v{rk}
            v_subrev_u32 v{rk}, s45, v{rk}
            s_mov_b64 exec, vcc
            ds_write_b32 v{rk}, v{rc}
            s_mov_b64 exec, -1
            ''')
    a(f'''
    v_mov_b32 v6, {L_FLAG}
    s_cmp_eq_u32 s50, 0
    s_cbranch_scc1 k2_f1
    ds_write_b32 v6, v5
k2_f1:
    s_cmp_eq_u32 s51, 0
    s_cbranch_scc1 k2_f2
    ds_write_b32 v6, v5 offset:4
k2_f2:
    s_waitcnt lgkmcnt(0)
    s_barrier
    ''')
    stamp(a,opt,3,'s[10:11]',1)
    a(f'''
    ds_read_b32 v8, v6 offset:4
    s_cmp_lg_u32 s{sW}, 15
    s_cbranch_scc1 k2_nosort
    v_lshlrev_b32 v9, 4, v1
    v_add_u32 v9, {L_HIST}, v9
    ds_read_b128 v[12:15], v9
    v_mov_b32 v10, {L_CH+63*4}
    v_cmp_gt_u32 vcc, 49, v1
    s_mov_b64 s[48:49], vcc
    s_waitcnt lgkmcnt(0)
    v_max3_u32 v11, v12, v13, v14
    v_max_u32 v11, v11, v15
    v_cmp_lt_u32 vcc, {CAP}, v11
    s_cbranch_vccz k2_s1
    ds_write_b32 v6, v5
k2_s1:
    s_mov_b64 exec, s[48:49]
    ''')
    for k in range(4):
        a(f'''
        v_min_u32 v{12+k}, {CAP}, v{12+k}
        v_add_u32 v{12+k}, 1, v{12+k}
        v_lshrrev_b32 v{12+k}, 1, v{12+k}            ; p
        v_lshlrev_b32 v{16+k}, 2, v{12+k}
        v_sub_u32 v{20+k}, v10, v{16+k}
        ds_add_rtn_u32 v{24+k}, v{20+k}, v5
        ''')
    a(f'''
    s_mov_b64 exec, -1
    v_lshlrev_b32 v9, 2, v1
    v_add_u32 v9, {L_CH}, v9
    ds_read_b32 v28, v9
    s_waitcnt lgkmcnt(0)
    v_mov_b32 v29, v28
    ''')
    scan64(a,29)
    a('v_sub_u32 v29, v29, v28')
    for k in range(4):
        a(f'''
        v_sub_u32 v{16+k}, {63*4}, v{16+k}
        ds_bpermute_b32 v{20+k}, v{16+k}, v29
        ''')
    a(f'''
    v_lshlrev_b32 v9, 2, v1
    v_mov_b32 v10, {L_PERM}
    s_waitcnt lgkmcnt(0)
    s_mov_b64 exec, s[48:49]
    ''')
    for k in range(4):
        a(f'''
        v_add_u32 v{20+k}, v{20+k}, v{24+k}
        v_lshl_add_u32 v{20+k}, v{20+k}, 2, v10
        v_add_u32 v{16+k}, {k}, v9
        v_lshl_or_b32 v{16+k}, v{12+k}, 16, v{16+k}
        ds_write_b32 v{20+k}, v{16+k}
        ''')
    a(f'''
    s_mov_b64 exec, -1
k2_nosort:
    s_waitcnt lgkmcnt(0)
    v_readfirstlane_b32 s51, v8                         ; modeB
    s_cmp_eq_u32 s51, 0
    s_cbranch_scc1 k2_nmb
    s_cmp_ge_u32 s{sW}, 14
    s_cbranch_scc1 k2_nmb
    s_cmp_lg_u32 s9, 0
    s_cbranch_scc1 k2_nmb
    ''')
    for r in range(16): a(f'ds_write_b32 v64, v{96+r} offset:{((r&3)+8*(r>>2))*128}')
    a(f'''
k2_nmb:
    s_mov_b32 s44, {NLOG2E}
    s_mov_b32 s45, 0xffff0000
    v_lshlrev_b32 v4, 16, v112
    v_and_b32 v5, s45, v112
    v_lshlrev_b32 v6, 16, v113
    v_and_b32 v81, s45, v113
    v_mov_b32 v82, v7                                   ; 64*half + 8*j
    v_mul_f32 v4, s44, v4
    v_mul_f32 v5, s44, v5
    v_mul_f32 v6, s44, v6
    v_mul_f32 v7, s44, v81
    v_and_b32 v51, 7, v1
    v_lshlrev_b32 v51, 4, v51
    v_mov_b32 v53, v51
    v_mov_b32 v48, 0
    v_mov_b32 v49, 0
    v_lshrrev_b32 v83, 3, v1                            ; slot
    v_mov_b32 v84, {L_FLAG}
    s_lshl_b32 s52, s{sBK}, 7
    s_movk_i32 s53, {RS}
    s_waitcnt lgkmcnt(0)
    s_barrier
    ''')
    stamp(a,opt,4,'s[10:11]',1)
    a(f'''
    ds_read_b32 v85, v84
    s_mov_b32 s54, 0                                    ; pass
    s_cmp_ge_u32 s{sW}, 12
    s_cbranch_scc1 k2_split
    s_lshl_b32 s44, s{sW}, 5
    s_add_u32 s44, s44, {L_PERM+16}
k2_group:
    v_lshl_add_u32 v80, v83, 2, s44
    ds_read_b32 v80, v80
    s_waitcnt lgkmcnt(0)
    v_readfirstlane_b32 s40, v80
    v_and_b32 v80, 0xffff, v80
    v_mul_u32_u24 v54, s53, v80
    s_lshr_b32 s40, s40, 16
    s_branch k2_go
k2_split:
    s_lshl_b32 s44, s{sW}, 2
    s_add_u32 s44, s44, {L_PERM-48}
    v_mov_b32 v80, s44
    ds_read_b32 v80, v80
    s_waitcnt lgkmcnt(0)
    v_readfirstlane_b32 s40, v80
    v_and_b32 v80, 0xffff, v80
    v_mul_u32_u24 v54, s53, v80
    s_lshr_b32 s40, s40, 16
    s_add_u32 s40, s40, 7
    s_lshr_b32 s40, s40, 3
    s_lshl_b32 s44, s40, 3
    v_mad_u32_u24 v54, v83, s44, v54
k2_go:
    v_readfirstlane_b32 s44, v85
    ds_read_u16 v50, v54
    ds_read_u16 v52, v54 offset:4
    ds_read_u16 v60, v54 offset:8
    ds_read_u16 v62, v54 offset:12
    v_lshl_add_u32 v55, v80, 7, v51                     ; dl*128 + 16*j
    v_lshl_add_u32 v58, v80, 14, v82
    v_add_u32 v58, s52, v58
    v_mov_b32 v61, v51
    v_mov_b32 v63, v51
    s_cmp_lg_u32 s44, 0
    s_cbranch_scc1 k2_done
    v_add_u32 v55, {L_A}, v55
    buffer_load_dwordx2 v[56:57], v58, {sr(sX,4)}, 0 offen
    ds_read_b128 v[8:11], v55
    s_mov_b32 s{sT+2}, s41
    v_mov_b64 v[16:17], 0
    v_mov_b64 v[18:19], 0
    v_mov_b64 v[20:21], 0
    v_mov_b64 v[22:23], 0
    s_cmp_eq_u32 s40, 0
    s_cbranch_scc1 k2_fin
    s_waitcnt lgkmcnt(1)
    buffer_load_dwordx4 v[24:27], v[50:51], {sr(sT,4)}, 0 idxen offen
    buffer_load_dwordx4 v[28:31], v[52:53], {sr(sT,4)}, 0 idxen offen
    buffer_load_dwordx4 v[32:35], v[60:61], {sr(sT,4)}, 0 idxen offen
    buffer_load_dwordx4 v[36:39], v[62:63], {sr(sT,4)}, 0 idxen offen
    ds_read_u16 v50, v54 offset:16
    ds_read_u16 v52, v54 offset:20
    ds_read_u16_d16_hi v48, v54 offset:2
    ds_read_u16_d16_hi v49, v54 offset:6
    s_cmp_eq_u32 s51, 0
    s_cbranch_scc1 k2_loopA
    s_waitcnt lgkmcnt(4)
    v_mov_b64 v[12:13], v[8:9]
    v_mov_b64 v[14:15], v[10:11]
    ''')
    mainloop(a, True)
    a('.p2align 6')
    mainloop(a, False)
    a(f'''
k2_fin:
    ds_read_b128 v[60:63], v55 offset:{L_U-L_A}
    s_cmp_lt_u32 s{sW}, 12
    s_cbranch_scc1 k2_epi
    s_nop 1
    ''')
    for r in range(16,24): a(f'v_add_f32_dpp v{r}, v{r}, v{r} row_ror:8 row_mask:0xf bank_mask:0xf')
    for op in ('v_permlane16_swap_b32','v_permlane32_swap_b32'):
        for r in range(8): a(f'v_mov_b32 v{64+r}, v{16+r}')
        a('s_nop 1')
        for r in range(8): a(f'{op} v{64+r}, v{16+r}')
        for r in range(8): a(f'v_add_f32 v{16+r}, v{16+r}, v{64+r}')
    a(f'''
k2_epi:
    v_pk_add_f32 v[16:17], v[16:17], {sr(sE,2)}
    v_pk_add_f32 v[18:19], v[18:19], {sr(sE,2)}
    v_rcp_f32 v16, v16
    v_rcp_f32 v17, v17
    v_rcp_f32 v18, v18
    v_rcp_f32 v19, v19
    s_waitcnt vmcnt(0) lgkmcnt(0)
    v_lshlrev_b32 v64, 16, v56
    v_and_b32 v65, s45, v56
    v_lshlrev_b32 v66, 16, v57
    v_and_b32 v67, s45, v57
    v_pk_fma_f32 v[60:61], v[20:21], v[16:17], v[60:61]
    v_pk_fma_f32 v[62:63], v[22:23], v[18:19], v[62:63]
    v_mov_b32 v70, 0x207
    v_pk_add_f32 v[68:69], v[60:61], v[62:63]
    v_max_f32 v60, 0, v60
    v_max_f32 v61, 0, v61
    v_add_f32 v68, v68, v69
    v_max_f32 v62, 0, v62
    v_max_f32 v63, 0, v63
    v_cmp_class_f32 vcc, v68, v70
    v_pk_add_f32 v[60:61], v[60:61], v[64:65]
    v_pk_add_f32 v[62:63], v[62:63], v[66:67]
    v_cvt_pk_bf16_f32 v60, v60, v61
    v_cvt_pk_bf16_f32 v61, v62, v63
    buffer_store_dwordx2 v[60:61], v58, {sr(sO,4)}, 0 offen
    s_cbranch_vccz k2_ok
    v_mov_b32 v70, 1
    ds_write_b32 v84, v70
k2_ok:
    s_cmp_ge_u32 s{sW}, 12
    s_cbranch_scc1 k2_done
    s_cmp_lg_u32 s54, 0
    s_cbranch_scc1 k2_done
    s_mov_b32 s54, 1
    s_sub_u32 s44, 23, s{sW}
    s_lshl_b32 s44, s44, 5
    s_add_u32 s44, s44, {L_PERM+16}
    s_branch k2_group
k2_done:
    s_waitcnt lgkmcnt(0)
    ''')
    stamp(a,opt,5,'s[10:11]',1)
    a(f'''
    s_barrier
    ds_read_b32 v85, v84
    s_waitcnt lgkmcnt(0)
    v_readfirstlane_b32 s44, v85
    s_cmp_lg_u32 s44, 0
    s_cbranch_scc1 k2_slow
k2_end:
    s_endpgm
    ''')
    slow(a,opt)

def slow(a,opt):
    a(f'''
k2_slow:
    s_load_dwordx2 s[56:57], s[0:1], 40               ; w_b
    s_load_dwordx2 s[58:59], s[0:1], 64               ; w_v
    s_waitcnt vmcnt(0) lgkmcnt(0)
    s_barrier
    v_mov_b32 v116, 0
    v_mov_b32 v117, 0
    v_mov_b32 v118, 0
    v_mov_b32 v119, 0
    v_lshlrev_b32 v120, 4, v0
    ds_write_b128 v120, v[116:119]
    ds_write_b128 v120, v[116:119] offset:16384
    ds_write_b128 v120, v[116:119] offset:32768
    ds_write_b128 v120, v[116:119] offset:49152
    v_and_b32 v1, 63, v0
    v_and_b32 v2, 31, v1
    v_lshrrev_b32 v3, 5, v1
    v_cmp_eq_u32 vcc, 1, v3
    s_mov_b64 s[60:61], vcc
    v_mov_b32 v10, s56
    v_mov_b32 v11, s58
    v_cndmask_b32 v10, v10, v11, vcc
    v_mov_b32 v11, s57
    v_mov_b32 v12, s59
    v_cndmask_b32 v11, v11, v12, vcc
    s_lshl_b32 s44, s{sH}, 6
    v_lshl_add_u32 v8, v2, 1, s44                     ; 2*c
    v_add_u32 v9, 4096, v8
    v_add_co_u32 v10, vcc, v10, v9
    s_nop 1
    v_addc_co_u32 v11, vcc, 0, v11, vcc
    ''')
    for k in range(64): a(f'global_load_ushort v{32+k}, v[10:11], off offset:{k*128-4096}')
    a(f'''
    global_load_ushort v13, v8, s[6:7]
    s_waitcnt vmcnt(0)
    ''')
    for k in range(64): a(f'v_lshlrev_b32 v{32+k}, 16, v{32+k}')
    a(f'''
    v_lshlrev_b32 v13, 16, v13                        ; wc[c]
    v_lshlrev_b32 v14, 2, v1                          ; lane*4
    v_lshlrev_b32 v15, 2, v2
    v_add_u32 v15, {L_A}, v15
    v_mov_b32 v124, 0x80000000
    s_mov_b32 s62, {NLOG2E}
    s_mov_b32 s63, 0                                  ; chunk
    s_waitcnt lgkmcnt(0)
    s_barrier
k2_sl_chunk:
    s_lshl_b32 s44, s63, 9
    s_lshl_b32 s45, s{sBK}, 2
    s_add_u32 s44, s44, s45
    s_buffer_load_dword s64, {sr(sOF,4)}, s44
    s_mul_i32 s67, s63, {CHB}
    s_waitcnt lgkmcnt(0)
    s_lshr_b32 s65, s64, 16                           ; count
    s_and_b32 s64, s64, 0xffff                        ; start
    s_mov_b32 s66, 0
k2_sl_blk:
    s_cmp_ge_u32 s66, s65
    s_cbranch_scc1 k2_sl_next
    v_add_u32 v16, s66, v1
    v_cmp_gt_u32 vcc, s65, v16
    v_add_u32 v16, s64, v16
    v_lshlrev_b32 v17, 2, v16
    v_cndmask_b32 v16, v124, v16, vcc
    v_cndmask_b32 v17, v124, v17, vcc
    s_add_u32 s44, s67, {CH*4}
    buffer_load_ubyte v16, v16, {sr(sR,4)}, s44 offen
    buffer_load_dword v17, v17, {sr(sR,4)}, s67 offen
    s_waitcnt vmcnt(0)
    v_cmp_ne_u32 vcc, 0, v16
    s_mov_b64 s[68:69], vcc
    v_subrev_u32 v16, 1, v16
    v_and_b32 v18, 15, v16
    v_cmp_eq_u32 vcc, s{sW}, v18
    s_and_b64 s[68:69], s[68:69], vcc
k2_sl_edge:
    s_cmp_eq_u64 s[68:69], 0
    s_cbranch_scc1 k2_sl_bend
    s_ff1_i32_b64 s44, s[68:69]
    s_bitset0_b64 s[68:69], s44
    v_readlane_b32 s70, v16, s44                      ; dl
    v_readlane_b32 s71, v17, s44                      ; rec
    s_nop 3
    s_and_b32 s44, s71, 0xffff
    s_lshl_b32 s44, s44, 7
    s_add_u32 s45, s44, 64
    s_and_b32 s71, s71, 0xffff0000                    ; e
    s_buffer_load_dwordx16 s[72:87], {sr(sX,4)}, s44
    s_lshl_b32 s46, s70, 7
    v_add_u32 v19, s46, v15
    ds_read_b32 v20, v19
    s_lshl_b32 s46, s70, 8
    v_add_u32 v21, s46, v14
    ds_read_b32 v22, v21                              ; accumulator
    v_mov_b32 v23, 0
    s_waitcnt lgkmcnt(0)
    ''')
    for hlf in range(2):
        for i in range(16):
            k=32+hlf*32+2*i
            a(f'''
            s_lshl_b32 s46, s{72+i}, 16
            s_and_b32 s47, s{72+i}, 0xffff0000
            v_fmac_f32 v23, s46, v{k}
            v_fmac_f32 v23, s47, v{k+1}
            ''')
        if hlf==0:
            a(f'''
            s_buffer_load_dwordx16 s[72:87], {sr(sX,4)}, s45
            s_waitcnt lgkmcnt(0)
            ''')
    a(f'''
    s_cmp_lg_u32 s51, 0
    s_cbranch_scc1 k2_sl_raw
    v_log_f32 v20, v20
    s_nop 0
    v_add_f32 v20, {hex(f2u(60.0))}, v20
k2_sl_raw:
    v_fma_f32 v24, s71, v13, v23
    v_fma_f32 v24, v24, s62, v20
    v_exp_f32 v24, v24
    s_nop 0
    v_add_f32 v24, 1.0, v24
    v_rcp_f32 v24, v24
    s_nop 0
    v_mov_b32 v25, v24
    s_nop 1
    v_permlane32_swap_b32 v24, v25
    v_cndmask_b32 v23, 1.0, v23, s[60:61]
    v_fmac_f32 v22, v24, v23
    ds_write_b32 v21, v22
    s_waitcnt lgkmcnt(0)
    s_branch k2_sl_edge
k2_sl_bend:
    s_add_u32 s66, s66, 64
    s_branch k2_sl_blk
k2_sl_next:
    s_add_u32 s63, s63, 1
    s_cmp_lt_u32 s63, {NCH}
    s_cbranch_scc1 k2_sl_chunk
    ; outputs
    s_mov_b32 s70, s{sW}
    s_lshl_b32 s52, s{sBK}, 7
k2_sl_out:
    s_lshl_b32 s46, s70, 8
    v_add_u32 v21, s46, v14
    ds_read_b32 v22, v21
    s_lshl_b32 s46, s70, 7
    v_add_u32 v19, s46, v15
    ds_read_b32 v20, v19 offset:{L_U-L_A}
    s_lshl_b32 s46, s70, 14
    s_add_u32 s46, s46, s52
    v_add_u32 v26, s46, v8
    buffer_load_ushort v27, v26, {sr(sX,4)}, 0 offen
    s_waitcnt vmcnt(0) lgkmcnt(0)
    v_mov_b32 v25, v22
    s_nop 1
    v_permlane32_swap_b32 v22, v25
    v_lshlrev_b32 v27, 16, v27
    v_add_f32 v22, {hex(f2u(1e-6))}, v22
    v_rcp_f32 v22, v22
    s_nop 0
    v_fma_f32 v20, v25, v22, v20
    v_mul_f32 v28, 0, v20
    v_cmp_lt_f32 vcc, 0, v20
    s_nop 1
    v_cndmask_b32 v20, v28, v20, vcc
    v_add_f32 v20, v20, v27
    v_cvt_pk_bf16_f32 v20, v20, v20
    buffer_store_short v20, v26, {sr(sO,4)}, 0 offen
    s_add_u32 s70, s70, 16
    s_cmp_lt_u32 s70, 196
    s_cbranch_scc1 k2_sl_out
    s_endpgm
    ''')

HEADER = open('standalone__edge_featured_mpnn_gatedgcn__graph.s.ref').read().split('; Override launch')[0]

def desc(name, vg, sg):
    return f'''.p2align 6
.amdhsa_kernel {name}
  .amdhsa_next_free_vgpr {vg}
  .amdhsa_next_free_sgpr {sg}
  .amdhsa_accum_offset {(vg+3)//4*4}
  .amdhsa_group_segment_fixed_size 0
  .amdhsa_kernarg_size 96
  .amdhsa_user_sgpr_count 2
  .amdhsa_user_sgpr_kernarg_segment_ptr 1
  .amdhsa_system_sgpr_workgroup_id_x 1
.end_amdhsa_kernel
'''

def build(opt):
    out = HEADER
    out += f'; @launch kernel=k1_kernel grid=({K1_GRID},1,1) block=(512,1,1) lds={L1_SIZE}\n'
    out += f'; @launch kernel=k2_kernel grid=(256,1,1) block=(1024,1,1) lds={L2_SIZE}\n'
    out += '.amdgcn_target "amdgcn-amd-amdhsa--gfx950"\n.text\n'
    for name, fn in (('k1_kernel',k1),('k2_kernel',k2)):
        a=Asm(); fn(a,opt)
        out += f'.globl {name}\n.p2align 8\n.type {name},@function\n' + a.text()
    out += '.section .rodata,"a"\n'
    ts = opt.get('ts')
    out += desc('k1_kernel', 128 if ts else 104, 96 if ts else 32)
    out += desc('k2_kernel', 128, 96)
    return out

if __name__=='__main__':
    opt={}
    outp='standalone__edge_featured_mpnn_gatedgcn__graph.s'
    for x in sys.argv[1:]:
        k,v=x.split('=',1)
        if k=='o': outp=v
        else: opt[k]= int(v) if v.lstrip('-').isdigit() else v
    open(outp,'w').write(build(opt))
```

```python
import sys, struct

def f2u(x): return struct.unpack('<I', struct.pack('<f', x))[0]

N=25000; E=800000
NCH=250; CH=3200
TH=0x310000; DUMMY=25024; TROWS=25088
WS_RECD=0x700000; WS_RECB=0xA20000; WS_OFFS=0xB00000; WS_WF=0xB40000; WS_TS=0xC00000
NLOG2E=f2u(-1.4426950408889634)
K60=f2u(2.0**-60)
EPS60=f2u(1e-6*2.0**60)

class Asm:
    def __init__(s): s.l=[]
    def __call__(s, t):
        for ln in t.strip('\n').split('\n'):
            if not ln.strip(): continue
            s.l.append(ln.strip() if ln.strip().endswith(':') else '    '+ln.strip())
    def text(s): return '\n'.join(s.l)+'\n'

def vr(a,n): return f'v[{a}:{a+n-1}]'
def sr(a,n): return f's[{a}:{a+n-1}]'

def scan64(a, v):
    for d in ('row_shr:1 row_mask:0xf','row_shr:2 row_mask:0xf','row_shr:4 row_mask:0xf','row_shr:8 row_mask:0xf',
              'row_bcast:15 row_mask:0xa','row_bcast:31 row_mask:0xc'):
        a('s_nop 1')
        a(f'v_add_u32_dpp v{v}, v{v}, v{v} {d} bank_mask:0xf')

TSB=70
def stamp(a, opt, idx, clk=False):
    if not opt.get('ts'): return
    a(f"{'s_memtime' if clk else 's_memrealtime'} s[{TSB+2*idx}:{TSB+2*idx+1}]")
def stamp_out(a, opt, idxs, ws, kern):
    if not opt.get('ts'): return
    if opt.get('amp') is not None:
        L=f'amp_{len(a.l)}'
        if kern==0:
            a(f'''
            s_mov_b64 exec, -1
            s_waitcnt lgkmcnt(0)
            s_cmp_lg_u32 s2, {opt.get('dbgk1',0)}
            s_cbranch_scc1 {L}
            v_cmp_eq_u32 vcc, 0, v0
            s_mov_b64 exec, vcc
            s_cbranch_execz {L}
            v_mov_b32 v125, {WS_TS}
            ''')
            for i in idxs:
                a(f'''
                v_mov_b32 v126, s{TSB+2*i}
                global_store_dword v125, v126, {ws} offset:{4*i}
                s_nop 1
                ''')
            a(L+':')
            return
        lo,hi=[int(x) for x in str(opt['amp']).split('_')]
        reg=lambda i: f's{48+i}' if i<8 else f's{TSB+2*(i-8)}'
        a(f'''
        s_cmp_lg_u32 s2, {opt.get('dbgwg',0)}
        s_cbranch_scc1 {L}
        s_cmp_lg_u32 s34, {opt.get('dbgw',0)}
        s_cbranch_scc1 {L}
        s_add_u32 s4, s10, {WS_TS}
        s_addc_u32 s5, s11, 0
        s_load_dwordx8 s[48:55], s[4:5], 0
        s_waitcnt lgkmcnt(0)
        s_sub_u32 s56, {reg(hi)}, {reg(lo)}
        s_min_u32 s56, s56, 4000
        s_mul_i32 s56, s56, 10
        s_add_u32 s56, s56, 4000
        s_mov_b32 s57, 200000
{L}_l:
        s_memrealtime s[58:59]
        s_waitcnt lgkmcnt(0)
        s_sub_u32 s58, s58, s48
        s_cmp_ge_u32 s58, s56
        s_cbranch_scc1 {L}
        s_sub_u32 s57, s57, 1
        s_cmp_lg_u32 s57, 0
        s_cbranch_scc1 {L}_l
{L}:
        ''')
        return
    if opt.get('dbg') and kern==1:
        L=f'dbg_{len(a.l)}'
        a(f'''
        s_mov_b64 exec, -1
        s_load_dwordx2 s[66:67], s[0:1], 80
        s_add_u32 s4, s10, {WS_TS + opt.get('dbgk1',0)*2048}
        s_addc_u32 s5, s11, 0
        s_load_dwordx16 s[48:63], s[4:5], 0
        s_waitcnt lgkmcnt(0)
        s_cmp_lg_u32 s2, {opt.get('dbgwg',0)}
        s_cbranch_scc1 {L}
        v_cmp_eq_u32 vcc, {opt.get('dbgt',0)}, v0
        s_mov_b64 exec, vcc
        s_cbranch_execz {L}
        v_mov_b32 v125, 0
        ''')
        for i in list(idxs)[:8]:
            a(f'''
            v_mov_b32 v126, s{TSB+2*i}
            v_mov_b32 v127, s{48+2*i}
            v_subrev_u32 v126, s48, v126
            v_subrev_u32 v127, s48, v127
            global_store_dword v125, v126, s[66:67] offset:{4*i + 32}
            global_store_dword v125, v127, s[66:67] offset:{4*i}
            s_nop 1
            ''')
        a(L+':')
        return
    a(f'''
    s_mov_b64 exec, -1
    s_waitcnt lgkmcnt(0)
    v_lshrrev_b32 v125, 6, v0
    v_lshlrev_b32 v125, 6, v125
    s_lshl_b32 s69, s2, 10
    s_add_u32 s69, s69, {WS_TS + kern*0x100000}
    v_add_u32 v125, s69, v125
    s_mov_b64 exec, 1
    ''')
    idxs=list(idxs)
    for i in range(12): a(f'v_mov_b32 v{112+i}, ' + (f's{TSB+2*i}' if i in idxs else '0'))
    for q in range((max(idxs)+4)//4): a(f'global_store_dwordx4 v125, {vr(112+4*q,4)}, {ws} offset:{16*q}')

K1_B0=200; K1_GRID=456
L1_HIST=16384; L1_OFFL=18432
L1_X=0; L1_O=16384; L1_WL=49152; L1_SIZE=49152+4*4128
WFH=8448

def k1(a, opt):
    st = opt.get('k1store','')
    stt = opt.get('k1tstore',st)
    ld = opt.get('k1load','')
    xl = opt.get('k1xload','')
    a('k1_kernel:')
    stamp(a,opt,0)
    a(f"""
    s_cmp_lt_u32 s2, {K1_B0}
    s_cbranch_scc1 k1_gemm
    s_sub_u32 s3, s2, {K1_B0}                 ; chunk
    s_cmp_ge_u32 s3, {NCH}
    s_cbranch_scc1 k1_wf
    s_load_dwordx2 s[8:9], s[0:1], 24         ; dst
    s_load_dwordx4 s[4:7], s[0:1], 8
    s_load_dwordx2 s[10:11], s[0:1], 88       ; ws
    v_lshlrev_b32 v3, 2, v0
    v_mov_b32 v4, 0
    ds_write_b32 v3, v4 offset:{L1_HIST}
    v_lshlrev_b32 v1, 5, v0
    s_mul_i32 s12, s3, {CH*4}
    v_add_u32 v1, s12, v1
    v_lshrrev_b32 v2, 1, v1
    v_mov_b32 v5, 1
    v_and_b32 v6, 63, v0
    v_lshlrev_b32 v6, 3, v6
    s_mov_b32 s16, 0xffff0000
    s_movk_i32 s17, 0x1fc
    v_cmp_gt_u32 vcc, 400, v0
    s_mov_b64 s[14:15], vcc
    s_mov_b64 exec, vcc
    s_waitcnt lgkmcnt(0)
    s_cbranch_execz k1_b1
    global_load_dwordx4 v[8:11], v1, s[8:9] {ld}
    global_load_dwordx4 v[12:15], v1, s[8:9] offset:16 {ld}
k1_b1:
    s_barrier
    """)
    stamp(a,opt,1)
    a(f"""
    s_cbranch_execz k1_b2
    global_load_dwordx4 v[16:19], v1, s[6:7] {ld}
    global_load_dwordx4 v[20:23], v1, s[6:7] offset:16 {ld}
    global_load_dwordx4 v[24:27], v2, s[4:5] {ld}
    s_waitcnt vmcnt(3)
    """)
    stamp(a,opt,2)
    for i in range(8):
        a(f"""
        v_lshlrev_b32 v{28+i}, 2, v{8+i}
        v_and_b32 v{28+i}, s17, v{28+i}
        ds_add_rtn_u32 v{36+i}, v{28+i}, v5 offset:{L1_HIST}
        """)
    a(f"""
k1_b2:
    s_mov_b64 exec, -1
    s_waitcnt lgkmcnt(0)
    s_barrier
    ds_read_b64 v[44:45], v6 offset:{L1_HIST}
    """)
    stamp(a,opt,3)
    for i in range(8): a(f'v_lshrrev_b32 v{8+i}, 7, v{8+i}')
    a(f"""
    s_waitcnt lgkmcnt(0)
    v_add_u32 v46, v44, v45
    v_mov_b32 v47, v46
    """)
    scan64(a,47)
    a(f"""
    v_sub_u32 v48, v47, v46
    v_add_u32 v49, v48, v44
    ds_write_b64 v6, v[48:49] offset:{L1_OFFL}
    s_mov_b64 exec, s[14:15]
    s_cbranch_execz k1_b3
    """)
    for i in range(8): a(f'ds_read_b32 v{28+i}, v{28+i} offset:{L1_OFFL}')
    for i in range(8):
        a(f"""
        s_waitcnt lgkmcnt(7)
        v_add_u32 v{28+i}, v{28+i}, v{36+i}
        v_lshlrev_b32 v{36+i}, 2, v{28+i}
        ds_write_b8 v{28+i}, v{8+i} offset:{CH*4}
        """)
    a('s_waitcnt vmcnt(0)')
    for i in range(8):
        if i%2==0: a(f'v_lshl_or_b32 v{16+i}, v{24+i//2}, 16, v{16+i}')
        else:      a(f'v_and_or_b32 v{16+i}, v{24+i//2}, s16, v{16+i}')
        a(f'ds_write_b32 v{36+i}, v{16+i}')
    a(f"""
    s_branch k1_b4
k1_b3:
    s_mov_b64 exec, -1
    s_mul_i32 s13, s3, {CH}
    v_min_u32 v44, 255, v44
    v_min_u32 v45, 255, v45
    v_add_u32 v48, s13, v48
    v_add_u32 v49, s13, v49
    v_lshl_or_b32 v50, v44, 24, v48
    v_lshl_or_b32 v51, v45, 24, v49
    s_and_b32 s12, s3, 7
    s_lshl_b32 s12, s12, 7
    s_lshr_b32 s13, s3, 3
    s_lshl_b32 s13, s13, 2
    s_add_u32 s12, s12, s13
    s_add_u32 s12, s12, {WS_OFFS}
    v_lshl_add_u32 v52, v6, 8, s12
    global_store_dword v52, v50, s[10:11]
    global_store_dword v52, v51, s[10:11] offset:1024
k1_b4:
    s_mov_b64 exec, -1
    v_lshlrev_b32 v1, 4, v0
    s_mul_i32 s12, s3, {CH*4}
    s_add_u32 s12, s12, {WS_RECD}
    s_mul_i32 s13, s3, {CH}
    s_add_u32 s13, s13, {WS_RECB-CH*4+8192}
    v_add_u32 v2, s12, v1
    v_add_u32 v3, 8192, v2
    v_add_u32 v4, s13, v1
    v_cmp_gt_u32 vcc, {CH*4//16-512}, v0
    s_nop 1
    v_cndmask_b32 v3, v4, v3, vcc
    v_cmp_gt_u32 vcc, {CH*5//16-512}, v0
    s_waitcnt lgkmcnt(0)
    s_barrier
    """)
    stamp(a,opt,4)
    a(f"""
    ds_read_b128 v[8:11], v1
    ds_read_b128 v[12:15], v1 offset:8192
    s_waitcnt lgkmcnt(1)
    global_store_dwordx4 v2, v[8:11], s[10:11] {st}
    s_mov_b64 exec, vcc
    s_waitcnt lgkmcnt(0)
    global_store_dwordx4 v3, v[12:15], s[10:11] {st}
    """)
    if opt.get('ts'):
        stamp(a,opt,5)
        a('s_waitcnt vmcnt(0)')
        stamp(a,opt,6)
        stamp_out(a,opt,range(7),'s[10:11]',0)
    a('s_endpgm')

    a(f"""
k1_wf:
    s_cmp_ge_u32 s3, 256
    s_cbranch_scc1 k1_end
    s_load_dwordx2 s[4:5], s[0:1], 32         ; w_a
    s_load_dwordx4 s[16:19], s[0:1], 48       ; w_c, w_u
    s_load_dwordx2 s[10:11], s[0:1], 88       ; ws
    v_lshrrev_b32 v1, 6, v0
    v_and_b32 v2, 63, v0                      ; lane
    v_readfirstlane_b32 s12, v1
    v_and_b32 v3, 31, v0
    v_lshrrev_b32 v4, 5, v2                   ; kh
    v_lshlrev_b32 v3, 1, v3
    v_lshl_add_u32 v3, v4, 10, v3             ; kh*8*128 + n*2
    s_lshr_b32 s13, s12, 2
    s_lshl_b32 s13, s13, 6
    s_and_b32 s14, s12, 1
    s_lshl_b32 s14, s14, 12                   ; 2*(w&1)*2048
    s_add_u32 s13, s13, s14
    v_add_u32 v3, s13, v3
    s_and_b32 s15, s3, 7
    s_lshl_b32 s15, s15, 7
    s_add_u32 s15, s15, {WS_OFFS+31*4}
    v_lshl_add_u32 v5, v0, 10, s15
    v_mov_b32 v6, 0
    s_waitcnt lgkmcnt(0)
    s_cmp_ge_u32 s12, 2
    s_cbranch_scc1 k1_wf1
    global_store_dword v5, v6, s[10:11]
k1_wf1:
    s_cmp_lg_u32 s3, {NCH}
    s_cbranch_scc1 k1_end
    s_bitcmp1_b32 s12, 1
    s_cselect_b32 s4, s18, s4
    s_cselect_b32 s5, s19, s5
    """)
    for q in range(2):
        for j in range(8):
            a(f'global_load_ushort v{8+q*8+j}, v3, s[4:5] offset:{q*2048+j*128}')
    a(f"""
    v_lshlrev_b32 v32, 1, v2
    global_load_ushort v33, v32, s[16:17]
    s_lshr_b32 s13, s12, 2
    s_mul_i32 s13, s13, {WFH-8192}
    s_lshl_b32 s14, s12, 11
    s_add_u32 s13, s13, s14
    s_add_u32 s13, s13, {WS_WF}
    v_lshlrev_b32 v5, 4, v2
    v_add_u32 v5, s13, v5
    s_waitcnt vmcnt(0)
    """)
    for q in range(2):
        for i in range(4):
            a(f'v_lshl_or_b32 v{24+q*4+i}, v{8+q*8+2*i+1}, 16, v{8+q*8+2*i}')
    a(f"""
    global_store_dwordx4 v5, v[24:27], s[10:11]
    global_store_dwordx4 v5, v[28:31], s[10:11] offset:1024
    s_cmp_lg_u32 s12, 0
    s_cbranch_scc1 k1_end
    v_and_b32 v6, 31, v0
    v_lshlrev_b32 v6, 2, v6
    s_mov_b32 s13, {TH}
    v_mad_u32_u24 v7, v4, s13, v6
    v_add_u32 v7, {DUMMY*128}, v7
    v_mov_b32 v8, 0x7c00
    global_store_dword v7, v8, s[10:11]
    s_movk_i32 s13, {WFH}
    v_mad_u32_u24 v6, v4, s13, v6
    v_add_u32 v6, {WS_WF+8192}, v6
    v_lshlrev_b32 v33, 16, v33
    v_mul_f32 v33, {NLOG2E}, v33
    global_store_dword v6, v33, s[10:11]
    s_endpgm
    """)

    a(f"""
k1_gemm:
    s_load_dwordx2 s[4:5], s[0:1], 0          ; x
    s_load_dwordx2 s[12:13], s[0:1], 40       ; w_b
    s_load_dwordx2 s[28:29], s[0:1], 64       ; w_v
    s_load_dwordx2 s[10:11], s[0:1], 88       ; ws
    v_lshrrev_b32 v1, 6, v0
    v_and_b32 v2, 63, v0                      ; lane
    v_readfirstlane_b32 s16, v1               ; wave
    s_lshr_b32 s17, s2, 3
    s_lshl_b32 s17, s17, 2
    s_lshr_b32 s22, s16, 1
    s_add_u32 s17, s17, s22
    s_lshl_b32 s17, s17, 3
    s_and_b32 s18, s2, 7
    s_add_u32 s17, s17, s18                   ; tile
    s_and_b32 s18, s16, 1                     ; half
    s_lshl_b32 s19, s17, 12                   ; tile*32*128
    v_lshrrev_b32 v3, 4, v2                   ; r>>1
    v_xor_b32 v5, v3, v2
    v_and_b32 v5, 7, v5
    v_lshlrev_b32 v5, 4, v5
    v_and_b32 v4, 56, v2
    v_lshl_add_u32 v5, v4, 4, v5
    s_lshl_b32 s20, s18, 11
    s_add_u32 s20, s20, s19
    v_add_u32 v5, s20, v5                     ; q even
    v_xor_b32 v14, 64, v5                     ; q odd
    s_lshl_b32 s21, s16, 11
    v_lshrrev_b32 v8, 2, v2
    v_and_b32 v9, 3, v2
    v_lshlrev_b32 v9, 4, v9
    v_lshl_add_u32 v8, v8, 7, v9
    s_lshl_b32 s20, s22, 11
    s_lshl_b32 s23, s18, 6
    s_add_u32 s20, s20, s23
    v_add_u32 v8, s20, v8
    s_mul_i32 s27, s18, {2*4128}
    s_add_u32 s27, s27, {L1_WL}
    s_lshl_b32 s20, s22, 10
    s_add_u32 s20, s20, s27
    s_mov_b32 s6, {N*128}
    s_mov_b32 s7, 0x20000
    s_movk_i32 s14, 0x2000
    s_mov_b32 s15, 0x20000
    s_movk_i32 s30, 0x2000
    s_mov_b32 s31, 0x20000
    s_mov_b32 m0, s21
    s_waitcnt lgkmcnt(0)
    buffer_load_dwordx4 v5, s[4:7], 0 offen {xl} lds
    buffer_load_dwordx4 v14, s[4:7], 0 offen offset:1024 {xl} lds
    s_mov_b32 m0, s20
    s_add_u32 s20, s20, 4128
    buffer_load_dwordx4 v8, s[12:15], 0 offen lds
    s_mov_b32 m0, s20
    s_nop 0
    buffer_load_dwordx4 v8, s[28:31], 0 offen lds
    """)
    stamp(a,opt,1)
    a(f"""
    s_mov_b32 s23, {NLOG2E}
    s_mov_b32 s24, 0x8000
    s_mov_b32 s25, 0xffff0000
    v_lshrrev_b32 v4, 5, v2                   ; kh
    v_and_b32 v7, 1, v3
    s_movk_i32 s20, 4128
    v_mul_u32_u24 v10, s20, v7
    v_bfe_u32 v6, v2, 2, 2
    v_lshl_add_u32 v6, v4, 3, v6
    v_lshl_add_u32 v10, v6, 6, v10
    v_lshrrev_b32 v9, 1, v9
    v_add3_u32 v10, v10, v9, s27
    s_lshl_b32 s21, s22, 12
    v_and_b32 v3, 31, v2
    v_bfe_u32 v5, v2, 1, 3
    v_xor_b32 v5, v5, v4
    v_lshlrev_b32 v5, 4, v5
    v_lshlrev_b32 v8, 7, v3                   ; n*128
    v_add3_u32 v5, v5, v8, s21
    v_xor_b32 v6, 32, v5
    v_xor_b32 v7, 64, v5
    v_xor_b32 v14, 96, v5
    s_lshl_b32 s27, s16, 12
    s_add_u32 s27, s27, {L1_O}
    v_and_b32 v15, 7, v2
    v_xor_b32 v15, v15, v4
    v_lshl_add_u32 v8, v15, 4, v8
    v_add_u32 v8, s27, v8
    v_lshrrev_b32 v1, 3, v2
    v_xor_b32 v15, v1, v2
    v_and_b32 v15, 7, v15
    v_lshlrev_b32 v15, 4, v15
    v_lshl_add_u32 v15, v1, 7, v15
    v_add_u32 v15, s27, v15
    s_mul_i32 s26, s18, {TH}
    s_add_u32 s26, s26, s19
    v_lshl_add_u32 v9, v2, 4, s26
    v_mov_b32 v12, 0
    v_mov_b32 v13, 0
    s_waitcnt vmcnt(0)
    s_barrier
    s_cmp_ge_u32 s17, 782
    s_cbranch_scc1 k1_end
    """)
    stamp(a,opt,2)
    xa=[5,6,7,14]
    for s_ in range(4):
        a(f'ds_read_b128 {vr(16+4*s_,4)}, v{xa[s_]}')
        for T in range(2):
            for u in range(2):
                a(f'ds_read_b64_tr_b16 {vr(32+16*T+4*s_+2*u,2)}, v10 offset:{(16*s_+4*u)*64+32*T}')
    DE=64; DO=80
    for s_ in range(4):
        c1 = '0' if s_==0 else vr(DE,16)
        c2 = '0' if s_==0 else vr(DO,16)
        a(f's_waitcnt lgkmcnt({15-5*s_})')
        a(f'v_mfma_f32_32x32x16_bf16 {vr(DE,16)}, {vr(32+4*s_,4)}, {vr(16+4*s_,4)}, {c1}')
        a(f'v_mfma_f32_32x32x16_bf16 {vr(DO,16)}, {vr(48+4*s_,4)}, {vr(16+4*s_,4)}, {c2}')
    stamp(a,opt,3)
    a('s_nop 9')
    a('v_xor_b32 v5, 32, v8')
    a('v_xor_b32 v6, 64, v8')
    a('v_xor_b32 v7, 96, v8')
    Bs=[DE+r for r in range(8)]+[DO+r for r in range(8)]
    for b in Bs: a(f'v_mul_f32 v{b}, s23, v{b}')
    for i in range(0,16,2):
        a(f'v_max3_f32 v12, |v{Bs[i]}|, |v{Bs[i+1]}|, v12')
        a(f'v_max3_f32 v13, |v{Bs[i]+8}|, |v{Bs[i+1]+8}|, v13')
    for T in range(2):
        for g in range(2):
            for i in range(4):
                b=(DE if T==0 else DO)+4*g+i
                a(f"""
                v_cvt_f16_f32 v{b}, v{b}
                v_sad_u32 v{b+8}, v{b+8}, v{b}, s24
                v_and_or_b32 v{b+8}, v{b+8}, s25, v{b}
                """)
            a(f'ds_write_b128 v{[8,5,6,7][2*T+g]}, {vr((DE if T==0 else DO)+8+4*g,4)}')
    a(f"""
    ds_read_b128 v[32:35], v15
    ds_read_b128 v[36:39], v15 offset:1024
    ds_read_b128 v[40:43], v15 offset:2048
    ds_read_b128 v[44:47], v15 offset:3072
    v_cmp_lt_f32 vcc, {hex(f2u(60000.0))}, v12
    s_cbranch_vccnz k1_bad
    v_cmp_lt_f32 vcc, {hex(f2u(2.0**40))}, v13
    s_cbranch_vccnz k1_bad
    v_cmp_le_f32 vcc, {hex(f2u(2.0**-30))}, v13
    s_cbranch_vccnz k1_good
    v_cmp_neq_f32 vcc, 0, v13
    s_cbranch_vccnz k1_bad
k1_good:
    """)
    stamp(a,opt,4)
    for q in range(4):
        a(f"""
        s_waitcnt lgkmcnt({3-q})
        global_store_dwordx4 v9, {vr(32+4*q,4)}, s[10:11] offset:{1024*q} {stt}
        """)
    if opt.get('ts'):
        stamp(a,opt,5)
        a('s_waitcnt vmcnt(0)')
        stamp(a,opt,6)
        stamp_out(a,opt,range(7),'s[10:11]',0)
    a("""
    s_endpgm
k1_bad:
    v_mov_b32 v48, 0x7e00
    v_mov_b32 v49, 0x7e00
    v_mov_b32 v50, 0x7e00
    v_mov_b32 v51, 0x7e00
    """)
    for q in range(4):
        a(f'global_store_dwordx4 v9, v[48:51], s[10:11] offset:{1024*q}')
    a("""
k1_end:
    s_endpgm
    """)

CAP=80; RS=(CAP+1)*4
AS=144
L_CNT=63552; L_CH=L_CNT+784; L_FLAG=L_CH+256; L_PERM=L_FLAG+16
L_X=65536; L_W=L_X+200*128; L_WC=L_W+8192; L_A=L_WC+256; L_U=L_A+196*AS; L2_SIZE=L_U+196*AS
assert L_PERM+196*4<=65536 and 16+196*RS+32<=L_CNT and L2_SIZE<=163840
sX=12; sO=16; sOF=20; sRD=24; sT=28; sRB=44
sBK=32; sH=33; sW=34; sK=36; sE=38
sM=48

def step(a, rs, modeB, opt, wait, ld=None, idx_off=None, e_off=None):
    G=60; P=68; S=72; W=76; WC=4; EA=8; AR=12; D=16; NN=20
    a(wait)
    ins=[]
    for c in range(4): ins.append(f'v_fma_mix_f32 v{G+c}, v48, v{WC+c}, v{rs+c} op_sel_hi:[0,0,1]')
    for c in range(4): ins.append(f'v_fma_mix_f32 v{G+4+c}, v49, v{WC+c}, v{rs+4+c} op_sel_hi:[0,0,1]')
    if not opt.get('nocomp'):
        if modeB:
            for q in range(4): ins.append(f'v_pk_add_f32 {vr(G+2*q,2)}, {vr(G+2*q,2)}, {vr(AR+2*(q&1),2)}')
        for c in (0,1,4,5,2,3,6,7): ins.append(f'v_exp_f32 v{G+c}, v{G+c}')
        for q in (0,2,1,3):
            m = sr(sK,2) if modeB else vr(EA+2*(q&1),2)
            ins.append(f'v_pk_fma_f32 {vr(G+2*q,2)}, {vr(G+2*q,2)}, {m}, {sr(sK,2)} clamp')
        ins += [f'v_pk_mul_f32 {vr(P,2)}, {vr(G,2)}, {vr(G+4,2)}',
            f'v_pk_mul_f32 {vr(P+2,2)}, {vr(G+2,2)}, {vr(G+6,2)}',
            f'v_pk_mul_f32 {vr(W,2)}, {vr(G+4,2)}, {vr(rs,2)}',
            f'v_rcp_f32 v{P}, v{P}',
            f'v_rcp_f32 v{P+1}, v{P+1}',
            f'v_pk_mul_f32 {vr(W+2,2)}, {vr(G+6,2)}, {vr(rs+2,2)}',
            f'v_rcp_f32 v{P+2}, v{P+2}',
            f'v_rcp_f32 v{P+3}, v{P+3}',
            f'v_pk_add_f32 {vr(S,2)}, {vr(G,2)}, {vr(G+4,2)}',
            f'v_pk_add_f32 {vr(S+2,2)}, {vr(G+2,2)}, {vr(G+6,2)}',
            f'v_pk_fma_f32 {vr(W,2)}, {vr(G,2)}, {vr(rs+4,2)}, {vr(W,2)}',
            f'v_pk_fma_f32 {vr(W+2,2)}, {vr(G+2,2)}, {vr(rs+6,2)}, {vr(W+2,2)}',
            f'v_pk_fma_f32 {vr(D,2)}, {vr(S,2)}, {vr(P,2)}, {vr(D,2)}',
            f'v_pk_fma_f32 {vr(D+2,2)}, {vr(S+2,2)}, {vr(P+2,2)}, {vr(D+2,2)}',
            f'v_pk_fma_f32 {vr(NN,2)}, {vr(W,2)}, {vr(P,2)}, {vr(NN,2)}',
            f'v_pk_fma_f32 {vr(NN+2,2)}, {vr(W+2,2)}, {vr(P+2,2)}, {vr(NN+2,2)}']
    mem=[]
    if ld is not None:
        mem += [(0,f'buffer_load_dwordx4 {vr(ld,4)}, v[50:51], {sr(sT,4)}, 0 idxen offen'),
                (0,f'buffer_load_dwordx4 {vr(ld+4,4)}, v[52:53], {sr(sT,4)}, 0 idxen offen')]
    p1 = opt.get('p1',8); p2=opt.get('p2',8)
    if idx_off is not None:
        mem += [(p1,f'ds_read_u16 v50, v54 offset:{idx_off}'),(p1,f'ds_read_u16 v52, v54 offset:{idx_off+4}')]
    if e_off is not None:
        mem += [(p2,f'ds_read_u16_d16_hi v48, v54 offset:{e_off+2}'),(p2,f'ds_read_u16_d16_hi v49, v54 offset:{e_off+6}')]
    for i in range(len(ins)+1):
        for p,m in mem:
            if min(p,len(ins))==i: a(m)
        if i<len(ins): a(ins[i])

def mainloop(a, modeB, opt):
    t = 'B' if modeB else 'A'
    a('.p2align 6')
    for u in range(3):
        a(f'k2_loop{t}{u}:')
        step(a, 24+8*u, modeB, opt, 's_waitcnt vmcnt(2) lgkmcnt(0)', ld=24+8*((u+2)%3), idx_off=(u+3)*8, e_off=(u+1)*8)
    a(f'''
    v_add_u32 v54, 24, v54
    s_sub_u32 s40, s40, 1
    s_cmp_lg_u32 s40, s41
    s_cbranch_scc1 k2_loop{t}0
    s_cmp_eq_u32 s41, 0
    s_cbranch_scc1 k2_tail{t}
    s_mov_b32 s41, 0
    s_setprio 1
    s_branch k2_loop{t}0
k2_tail{t}:
    s_cmp_eq_u32 s54, 0
    s_cbranch_scc1 k2_tl{t}
    s_setprio 0
k2_tl{t}:
    ''')
    step(a, 24, modeB, opt, 's_waitcnt vmcnt(2) lgkmcnt(0)', e_off=8)
    step(a, 32, modeB, opt, 's_waitcnt vmcnt(0) lgkmcnt(0)')

def k2(a, opt):
    a('k2_kernel:')
    stamp(a,opt,0)
    a(f"""
    s_cmp_ge_u32 s2, 256
    s_cbranch_scc1 k2_end
    s_load_dwordx2 s[10:11], s[0:1], 88               ; ws
    s_load_dwordx2 s[{sX}:{sX+1}], s[0:1], 0          ; x
    s_load_dwordx2 s[{sO}:{sO+1}], s[0:1], 72         ; out
    v_mov_b32 v116, {DUMMY}
    v_mov_b32 v117, {DUMMY}
    v_mov_b32 v118, {DUMMY}
    v_mov_b32 v119, {DUMMY}
    v_lshlrev_b32 v120, 4, v0
    v_min_u32 v121, {L_CNT-16-49152}, v120
    ds_write_b128 v120, v[116:119]
    ds_write_b128 v120, v[116:119] offset:16384
    ds_write_b128 v120, v[116:119] offset:32768
    ds_write_b128 v121, v[116:119] offset:49152
    v_lshrrev_b32 v2, 6, v0
    v_and_b32 v1, 63, v0                              ; lane
    v_readfirstlane_b32 s{sW}, v2                     ; wave
    s_movk_i32 s5, {RS}
    v_mad_u32_u24 v121, s5, v0, 16
    v_cmp_gt_u32 vcc, 196, v0
    v_min_u32 v122, {(L_PERM-L_CNT)//4}, v0
    v_lshlrev_b32 v122, 2, v122
    v_cndmask_b32 v121, 0, v121, vcc
    s_and_b32 s{sBK}, s2, 3
    s_lshl_b32 s{sBK}, s{sBK}, 5
    s_lshr_b32 s3, s2, 3
    s_add_u32 s{sBK}, s{sBK}, s3                      ; bucket
    s_bfe_u32 s{sH}, s2, 0x10002                      ; half
    s_cmp_ge_u32 s{sW}, 5
    s_cbranch_scc1 k2_i1
    ds_write_b32 v122, v121 offset:{L_CNT}
k2_i1:
    v_lshrrev_b32 v3, 5, v1                           ; lane>>5
    v_and_b32 v2, 31, v1                              ; lane&31
    s_lshl_b32 s4, s{sW}, 6
    s_lshl_b32 s8, s{sBK}, 10
    s_add_u32 s4, s4, s8
    s_add_u32 s4, s4, {WS_OFFS}
    v_lshl_add_u32 v4, v3, 5, s4
    v_lshrrev_b32 v6, 4, v1
    v_xor_b32 v6, v6, v1
    v_and_b32 v6, 7, v6
    v_lshlrev_b32 v6, 4, v6
    v_lshrrev_b32 v7, 3, v1
    v_lshl_add_u32 v6, v7, 14, v6
    s_and_b32 s4, s{sW}, 1
    s_lshl_b32 s4, s4, 6
    v_xor_b32 v6, s4, v6
    s_lshl_b32 s4, s{sW}, 17
    s_lshl_b32 s8, s{sBK}, 7
    s_add_u32 s4, s4, s8
    v_add_u32 v6, s4, v6
    v_add_u32 v7, {128*16384}, v6
    s_lshl_b32 s9, s{sW}, 10
    s_add_u32 s9, s9, {L_X}
    s_mov_b32 s{sX+2}, {N*128}
    s_mov_b32 s{sX+3}, 0x20000
    s_mov_b32 m0, s9
    s_waitcnt lgkmcnt(0)
    global_load_dwordx4 v[8:11], v4, s[10:11]
    global_load_dwordx4 v[12:15], v4, s[10:11] offset:16
    buffer_load_dwordx4 v6, {sr(sX,4)}, 0 offen lds
    s_add_u32 s9, s9, 16384
    s_mov_b32 m0, s9
    s_cmp_ge_u32 s{sW}, 9
    s_cbranch_scc1 k2_d1
    buffer_load_dwordx4 v7, {sr(sX,4)}, 0 offen lds
k2_d1:
    s_mul_i32 s4, s{sH}, {WFH}
    s_add_u32 s4, s4, {WS_WF}
    s_add_u32 s{sOF}, s10, s4
    s_addc_u32 s{sOF+1}, s11, 0
    s_movk_i32 s{sOF+2}, {WFH}
    s_mov_b32 s{sOF+3}, 0x20000
    s_cmp_lt_u32 s{sW}, 7
    s_cbranch_scc1 k2_d2
    s_sub_u32 s4, s{sW}, 7
    s_lshl_b32 s4, s4, 10
    v_lshl_add_u32 v6, v1, 4, s4
    s_add_u32 s4, s4, {L_W}
    s_mov_b32 m0, s4
    s_cmp_lg_u32 s{sW}, 15
    s_cselect_b64 exec, -1, 0xffff
    buffer_load_dwordx4 v6, {sr(sOF,4)}, 0 offen lds
    s_mov_b64 exec, -1
k2_d2:
    """)
    stamp(a,opt,1)
    a(f"""
    s_mov_b32 s{sO+2}, {N*128}
    s_mov_b32 s{sO+3}, 0x20000
    s_add_u32 s{sRD}, s10, {WS_RECD}
    s_addc_u32 s{sRD+1}, s11, 0
    s_or_b32 s{sRD+1}, s{sRD+1}, 0x40000              ; stride 4
    s_mov_b32 s{sRD+2}, {E}
    s_mov_b32 s{sRD+3}, 0x20000
    s_add_u32 s{sRB}, s10, {WS_RECB}
    s_addc_u32 s{sRB+1}, s11, 0
    s_mov_b32 s{sRB+2}, {E}
    s_mov_b32 s{sRB+3}, 0x20000
    s_mul_i32 s8, s{sH}, {TH}
    s_add_u32 s42, s10, s8
    s_addc_u32 s43, s11, 0
    s_mov_b32 s{sT}, s42
    s_or_b32 s{sT+1}, s43, 0x800000                   ; stride 128
    s_mov_b32 s{sT+2}, {0 if opt.get('nogather') else TROWS}
    s_mov_b32 s{sT+3}, 0x20000
    s_mov_b32 s{sK}, {K60}
    s_mov_b32 s{sK+1}, {K60}
    s_mov_b32 s{sE}, {EPS60}
    s_mov_b32 s{sE+1}, {EPS60}
    v_add_u32 v124, 1, v2
    v_lshlrev_b32 v124, 24, v124                      ; (i+1) << 24
    v_mov_b32 v5, 4
    v_mov_b32 v6, {CAP*4+16}
    s_mov_b32 s35, 0
    s_mov_b32 s40, 0
    s_mov_b32 s64, 0
    s_lshr_b32 s8, s{sW}, 1                           ; tile
    s_and_b32 s9, s{sW}, 1                            ; matrix
    s_waitcnt vmcnt(0)
    """)
    for it in range(8):
        a(f"""
        v_cmp_le_u32 {sr(sM+2*it,2)}, v124, v{8+it}
        v_mad_u32_u24 v{48+it}, v{8+it}, 1, v2
        """)
    a('s_barrier')
    stamp(a,opt,2)
    for it in range(8):
        a(f"""
        s_or_b64 exec, {sr(sM+2*it,2)}, 1
        buffer_load_ubyte v{24+it}, v{48+it}, {sr(sRB,4)}, 0 offen
        buffer_load_dword v{16+it}, v{48+it}, {sr(sRD,4)}, 0 idxen
        """)
    a(f"""
    s_mov_b64 exec, -1
    v_max3_u32 v56, v8, v9, v10
    v_max3_u32 v57, v11, v12, v13
    v_max3_u32 v56, v14, v15, v56
    v_max_u32 v56, v56, v57
    v_add_u32 v125, {32<<24}, v124
    v_cmp_le_u32 vcc, {33<<24}, v56
    s_cbranch_vccz k2_r2_done
    v_cmp_le_u32 vcc, {65<<24}, v56
    s_cmp_lg_u64 vcc, 0
    s_cselect_b32 s35, 1, 0
    """)
    for it in range(8):
        a(f"""
        v_cmp_le_u32 vcc, v125, v{8+it}
        s_cbranch_vccz k2_r2_{it}
        s_bitset1_b32 s40, {it}
        v_add_u32 v{48+it}, 32, v{48+it}
        s_mov_b64 exec, vcc
        buffer_load_ubyte v{40+it}, v{48+it}, {sr(sRB,4)}, 0 offen
        buffer_load_dword v{32+it}, v{48+it}, {sr(sRD,4)}, 0 idxen
        s_mov_b64 exec, -1
k2_r2_{it}:
        """)
    a('k2_r2_done:')
    stamp(a,opt,3)
    def au(a):
        a(f"""
        s_cmp_lt_u32 s8, 7
        s_cbranch_scc0 k2_au_done
        v_bfe_u32 v64, v1, 1, 3
        v_xor_b32 v64, v64, v3
        v_lshlrev_b32 v64, 4, v64
        v_lshl_add_u32 v64, v2, 7, v64
        s_lshl_b32 s4, s8, 12
        s_add_u32 s4, s4, {L_X}
        v_add_u32 v64, s4, v64
        v_xor_b32 v65, 32, v64
        v_xor_b32 v66, 64, v64
        v_xor_b32 v67, 96, v64
        s_lshl_b32 s4, s9, 12
        s_add_u32 s4, s4, {L_W}
        v_lshl_add_u32 v112, v1, 4, s4
        ds_read_b128 v[68:71], v64
        ds_read_b128 v[80:83], v112
        ds_read_b128 v[72:75], v65
        ds_read_b128 v[84:87], v112 offset:1024
        ds_read_b128 v[76:79], v66
        ds_read_b128 v[88:91], v112 offset:2048
        ds_read_b128 v[116:119], v67
        ds_read_b128 v[92:95], v112 offset:3072
        s_movk_i32 s4, {AS}
        v_mul_u32_u24 v65, s4, v2
        v_lshl_add_u32 v65, v3, 4, v65
        s_mul_i32 s4, s8, {32*AS}
        s_mul_i32 s66, s9, {L_U-L_A}
        s_add_u32 s4, s4, s66
        s_add_u32 s4, s4, {L_A}
        v_add_u32 v65, s4, v65
        s_cmp_lt_u32 s8, 6
        s_cselect_b32 s66, -1, 15
        s_mov_b32 s67, s66
        s_mov_b32 s4, {NLOG2E}
        v_mov_b32 v66, 0
        """)
        xf=[68,72,76,116]
        for s_ in range(4):
            c = '0' if s_==0 else vr(96,16)
            a(f's_waitcnt lgkmcnt({6-2*s_})')
            a(f'v_mfma_f32_32x32x16_bf16 {vr(96,16)}, {vr(80+4*s_,4)}, {vr(xf[s_],4)}, {c}')
        a(f"""
        s_nop 7
        s_mov_b64 exec, s[66:67]
        s_cmp_eq_u32 s9, 0
        s_nop 1
        s_cbranch_scc1 k2_au_a
        """)
        for g in range(4): a(f'ds_write_b128 v65, {vr(96+4*g,4)} offset:{32*g}')
        a("""
        s_branch k2_au_x
k2_au_a:
        """)
        for r in range(16): a(f'v_mul_f32 v{96+r}, s4, v{96+r}')
        for r in range(0,16,2): a(f'v_max3_f32 v66, |v{96+r}|, |v{96+r+1}|, v66')
        for r in range(16): a(f'v_add_f32 v{80+r}, {hex(f2u(-60.0))}, v{96+r}')
        for r in range(16): a(f'v_exp_f32 v{80+r}, v{80+r}')
        a(f'v_cmp_lt_f32 vcc, {hex(f2u(60.0))}, v66')
        for g in range(4): a(f'ds_write_b128 v65, {vr(80+4*g,4)} offset:{32*g}')
        a(f"""
        s_cmp_lg_u64 vcc, 0
        s_cselect_b32 s64, 1, 0
k2_au_x:
        s_mov_b64 exec, -1
k2_au_done:
        """)
    au(a)
    for pr in range(5):
        if pr>0:
            a('s_waitcnt lgkmcnt(0)')
            for it in (2*pr-1, 2*pr-2):
                if it==2*pr-2: a(f's_mov_b64 exec, {sr(sM+2*it,2)}')
                a(f"""
                v_min_u32 v{48+it}, v{48+it}, v{24+it}
                ds_write_b32 v{48+it}, v{16+it}
                """)
        if pr<4:
            a(f's_waitcnt vmcnt({12-4*pr})')
            if pr==0: stamp(a,opt,4)
            for it in (2*pr, 2*pr+1):
                a(f"""
                s_mov_b64 exec, {sr(sM+2*it,2)}
                v_lshlrev_b32 v{48+it}, 2, v{24+it}
                ds_add_rtn_u32 v{48+it}, v{48+it}, v5 offset:{L_CNT}
                v_mad_u32_u24 v{24+it}, v{24+it}, s5, v6
                """)
    a(f"""
    s_mov_b64 exec, -1
    s_cmp_eq_u32 s40, 0
    s_cbranch_scc1 k2_a2_done
    """)
    for it in range(8):
        a(f"""
        s_bitcmp1_b32 s40, {it}
        s_cbranch_scc0 k2_a2_{it}
        v_cmp_le_u32 vcc, v125, v{8+it}
        v_lshlrev_b32 v{48+it}, 2, v{40+it}
        s_mov_b64 exec, vcc
        ds_add_rtn_u32 v{48+it}, v{48+it}, v5 offset:{L_CNT}
        v_mad_u32_u24 v{40+it}, v{40+it}, s5, v6
        s_waitcnt lgkmcnt(0)
        v_min_u32 v{48+it}, v{48+it}, v{40+it}
        ds_write_b32 v{48+it}, v{32+it}
        s_mov_b64 exec, -1
k2_a2_{it}:
        """)
    a(f"""
k2_a2_done:
    v_mov_b32 v84, {L_FLAG}
    s_or_b32 s4, s35, s64
    s_cbranch_scc0 k2_f2
    s_cmp_eq_u32 s35, 0
    s_cbranch_scc1 k2_f1
    ds_write_b32 v84, v5
k2_f1:
    s_cmp_eq_u32 s64, 0
    s_cbranch_scc1 k2_f2
    ds_write_b32 v84, v5 offset:4
k2_f2:
    s_waitcnt lgkmcnt(0)
    s_barrier
    """)
    stamp(a,opt,5)
    a(f'''
    s_mov_b32 s41, 0
    s_cmp_ge_u32 s{sW}, {opt.get('nwarm',0)}
    s_cbranch_scc1 k2_w2
    ; table rows: block of 128 rows = (wg>>3) + 32*(w/3*2 + (lane>>5)), 32-row tile (q + 1 + w%3) & 3
    s_mul_i32 s4, s{sW}, 43691
    s_lshr_b32 s4, s4, 17
    s_mul_i32 s41, s4, 3
    s_sub_u32 s41, s{sW}, s41
    s_add_u32 s41, s41, s2
    s_add_u32 s41, s41, 1
    s_and_b32 s41, s41, 3
    s_lshl_b32 s41, s41, 5
    s_lshl_b32 s4, s4, 6
    s_add_u32 s4, s4, s3
    v_lshl_add_u32 v115, v3, 5, s4
    v_lshl_add_u32 v115, v115, 7, s41
    v_add_u32 v115, v115, v2
    v_min_u32 v115, {TROWS-1}, v115
    v_lshlrev_b32 v115, 7, v115
    global_load_dword v114, v115, s[42:43]
    s_mov_b32 s41, 1
k2_w2:
    s_cmp_lg_u32 s{sW}, 15
    s_cbranch_scc1 k2_nosort
    s_setprio 3
    v_lshlrev_b32 v9, 4, v1
    ds_read_b128 v[12:15], v9 offset:{L_CNT}
    v_lshlrev_b32 v11, 2, v1
    v_mad_u32_u24 v9, s5, v11, 12
    v_mov_b32 v10, {63*4}
    v_mov_b32 v30, 1
    v_mov_b32 v32, 0
    s_mov_b32 s66, -1
    s_mov_b32 s67, 0x1ffff
    s_mov_b64 exec, s[66:67]
    s_waitcnt lgkmcnt(0)
    ''')
    for k in range(4):
        a(f'''
        v_sub_u32 v{12+k}, v{12+k}, v9
        {f'v_subrev_u32 v{12+k}, {k*RS}, v{12+k}' if k else ''}
        v_max_u32 v32, v32, v{12+k}
        v_min_u32 v{12+k}, {CAP*4+4}, v{12+k}
        v_lshrrev_b32 v{12+k}, 3, v{12+k}                ; p
        v_lshlrev_b32 v{16+k}, 2, v{12+k}
        v_sub_u32 v{16+k}, v10, v{16+k}
        ds_add_rtn_u32 v{24+k}, v{16+k}, v30 offset:{L_CH}
        ''')
    a(f'''
    s_mov_b64 exec, -1
    ds_read_b32 v28, v11 offset:{L_CH}
    v_cmp_lt_u32 vcc, {CAP*4+4}, v32
    s_cbranch_vccz k2_s1
    ds_write_b32 v84, v5
k2_s1:
    ''')
    for k in range(4):
        a(f'''
        v_add_u32 v{33+k}, {k}, v11
        v_lshl_or_b32 v{33+k}, v{12+k}, 16, v{33+k}
        ''')
    a(f'''
    s_waitcnt lgkmcnt(0)
    v_mov_b32 v29, v28
    ''')
    scan64(a,29)
    a('v_sub_u32 v29, v29, v28')
    for k in range(4): a(f'ds_bpermute_b32 v{20+k}, v{16+k}, v29')
    a('s_mov_b64 exec, s[66:67]')
    for k in range(4):
        a(f'''
        s_waitcnt lgkmcnt(3)
        v_add_lshl_u32 v{20+k}, v{20+k}, v{24+k}, 2
        ds_write_b32 v{20+k}, v{33+k} offset:{L_PERM}
        ''')
    a(f'''
    s_mov_b64 exec, -1
k2_nosort:
    ds_read_b32 v8, v84 offset:4
    v_and_b32 v51, 7, v1
    v_lshlrev_b32 v51, 4, v51
    v_add_u32 v82, {L_WC}, v51
    ds_read_b128 v[4:7], v82
    s_mov_b32 s65, 0xffff0000
    v_lshrrev_b32 v82, 1, v51
    s_lshl_b32 s4, s{sH}, 6
    v_add_u32 v82, s4, v82                              ; 64*half + 8*j
    v_mov_b32 v53, v51
    v_mov_b32 v61, v51
    v_mov_b32 v63, v51
    v_add_u32 v81, {L_A}, v51
    v_mov_b32 v48, 0
    v_mov_b32 v49, 0
    v_lshrrev_b32 v83, 3, v1                            ; slot
    s_lshl_b32 s66, s{sBK}, 7
    v_add_u32 v82, s66, v82
    s_movk_i32 s66, {AS}
    s_mov_b32 s54, 0                                    ; pass
    s_lshl_b32 s4, s{sW}, 5
    s_add_u32 s4, s4, {L_PERM+16}
    v_lshl_add_u32 v80, v83, 2, s4
    s_cmp_lt_u32 s{sW}, 12
    s_cbranch_scc1 k2_c1
    s_lshl_b32 s4, s{sW}, 2
    s_add_u32 s4, s4, {L_PERM-48}
    v_mov_b32 v80, s4
k2_c1:
    s_waitcnt lgkmcnt(0)
    v_readfirstlane_b32 s64, v8                         ; modeB
    s_cmp_eq_u32 s64, 0
    s_cbranch_scc1 k2_nmb
    s_cmp_lt_u32 s8, 7
    s_cbranch_scc0 k2_nmb
    s_cmp_lg_u32 s9, 0
    s_cbranch_scc1 k2_nmb
    s_cmp_lt_u32 s8, 6
    s_cselect_b32 exec_lo, -1, 15
    s_cselect_b32 exec_hi, -1, 15
    ''')
    for g in range(4): a(f'ds_write_b128 v65, {vr(96+4*g,4)} offset:{32*g}')
    a(f'''
    s_mov_b64 exec, -1
    s_waitcnt lgkmcnt(0)
k2_nmb:
    s_setprio 3
    s_barrier
    ''')
    stamp(a,opt,6)
    stamp(a,opt,8,True)
    a(f'''
    ds_read_b32 v85, v84
k2_group:
    ds_read_b32 v80, v80
    s_waitcnt lgkmcnt(0)
    v_readfirstlane_b32 s40, v80
    v_readfirstlane_b32 s4, v85
    v_and_b32 v80, 0xffff, v80
    v_mad_u32_u24 v54, s5, v80, 16
    s_lshr_b32 s40, s40, 16
    s_cmp_lt_u32 s{sW}, 12
    s_cbranch_scc1 k2_go
    s_add_u32 s40, s40, 7
    s_lshr_b32 s40, s40, 3
    s_max_u32 s40, s40, 2
    s_lshl_b32 s41, s40, 3
    v_mad_u32_u24 v54, v83, s41, v54
k2_go:
    ds_read_u16 v50, v54
    ds_read_u16 v52, v54 offset:4
    ds_read_u16 v60, v54 offset:8
    ds_read_u16 v62, v54 offset:12
    s_cmp_lg_u32 s4, 0
    s_cbranch_scc1 k2_done
    v_mad_u32_u24 v55, v80, s66, v81                    ; A row + 16*j
    v_lshl_add_u32 v58, v80, 14, v82
    ds_read_b128 v[8:11], v55
    buffer_load_dwordx2 v[56:57], v58, {sr(sX,4)}, 0 offen
    s_max_u32 s40, s40, 2                               ; L
    s_mul_i32 s4, s40, 43691
    s_lshr_b32 s4, s4, 17
    s_mul_i32 s41, s4, 3
    s_sub_u32 s67, s40, s41
    s_mov_b32 s40, s4
    s_cmp_gt_u32 s40, {opt.get('thr',2)}
    s_cselect_b32 s41, {opt.get('thr',2)}, 0
    s_cmp_eq_u32 s54, 0
    s_cselect_b32 s41, 0, s41
    v_mov_b64 v[16:17], 0
    v_mov_b64 v[18:19], 0
    v_mov_b64 v[20:21], 0
    v_mov_b64 v[22:23], 0
    s_cmp_eq_u32 s67, 1
    s_waitcnt lgkmcnt(1)
    s_cbranch_scc1 k2_e1
    s_cmp_eq_u32 s67, 0
    s_cbranch_scc1 k2_e2
    ''')
    for u in range(3):
        if u: a(f'k2_e{u}:')
        r0=24+8*u; r1=24+8*((u+1)%3)
        a(f'''
        buffer_load_dwordx4 {vr(r0,4)}, v[50:51], {sr(sT,4)}, 0 idxen offen
        buffer_load_dwordx4 {vr(r0+4,4)}, v[52:53], {sr(sT,4)}, 0 idxen offen
        buffer_load_dwordx4 {vr(r1,4)}, v[60:61], {sr(sT,4)}, 0 idxen offen
        buffer_load_dwordx4 {vr(r1+4,4)}, v[62:63], {sr(sT,4)}, 0 idxen offen
        ds_read_u16 v50, v54 offset:16
        ds_read_u16 v52, v54 offset:20
        ds_read_u16_d16_hi v48, v54 offset:2
        ds_read_u16_d16_hi v49, v54 offset:6
        ''')
        if u: a(f'v_subrev_u32 v54, {8*u}, v54')
        a(f'''
        s_cmp_lg_u32 s64, 0
        s_cbranch_scc1 k2_eB{u}
        ''')
        if u==0:
            a('''
            s_cmp_eq_u32 s40, 0
            s_cbranch_scc1 k2_tailA
            ''')
        a(f's_branch k2_loopA{u}')
    for u in range(3):
        a(f'''
k2_eB{u}:
        s_waitcnt lgkmcnt(4)
        v_mov_b64 v[12:13], v[8:9]
        v_mov_b64 v[14:15], v[10:11]
        ''')
        if u==0:
            a('''
            s_cmp_eq_u32 s40, 0
            s_cbranch_scc1 k2_tailB
            ''')
        a(f's_branch k2_loopB{u}')
    mainloop(a, False, opt)
    a(f'''
k2_fin:
    ds_read_b128 v[64:67], v55 offset:{L_U-L_A}
    s_cmp_lt_u32 s{sW}, 12
    s_cbranch_scc0 k2_red
k2_epi:
    v_pk_add_f32 v[16:17], v[16:17], {sr(sE,2)}
    v_pk_add_f32 v[18:19], v[18:19], {sr(sE,2)}
    v_lshlrev_b32 v68, 16, v56
    v_rcp_f32 v16, v16
    v_rcp_f32 v17, v17
    v_rcp_f32 v18, v18
    v_rcp_f32 v19, v19
    v_and_b32 v69, s65, v56
    v_lshlrev_b32 v70, 16, v57
    v_and_b32 v71, s65, v57
    v_mov_b32 v61, v51
    v_mov_b32 v63, v51
    s_movk_i32 s4, 0x207
    s_waitcnt lgkmcnt(0)
    v_pk_fma_f32 v[64:65], v[20:21], v[16:17], v[64:65]
    v_pk_fma_f32 v[66:67], v[22:23], v[18:19], v[66:67]
    s_sub_u32 s41, 23, s{sW}
    v_pk_add_f32 v[72:73], v[64:65], v[66:67]
    v_max_f32 v64, 0, v64
    v_max_f32 v65, 0, v65
    v_add_f32 v72, v72, v73
    v_max_f32 v66, 0, v66
    v_max_f32 v67, 0, v67
    v_cmp_class_f32_e64 vcc, v72, s4
    v_pk_add_f32 v[64:65], v[64:65], v[68:69]
    v_pk_add_f32 v[66:67], v[66:67], v[70:71]
    s_lshl_b32 s41, s41, 5
    v_cvt_pk_bf16_f32 v64, v64, v65
    v_cvt_pk_bf16_f32 v65, v66, v67
    s_add_u32 s41, s41, {L_PERM+16}
    buffer_store_dwordx2 v[64:65], v58, {sr(sO,4)}, 0 offen
    s_cbranch_vccz k2_ok
    v_mov_b32 v70, 1
    ds_write_b32 v84, v70
k2_ok:
    s_cmp_ge_u32 s{sW}, 12
    s_cbranch_scc1 k2_done
    s_cmp_lg_u32 s54, 0
    s_cbranch_scc1 k2_done
    s_mov_b32 s54, 1
    s_setprio 2
    v_lshl_add_u32 v80, v83, 2, s41
    s_branch k2_group
k2_done:
    s_waitcnt lgkmcnt(0)
    ''')
    stamp(a,opt,7)
    stamp(a,opt,9,True)
    a(f'''
    s_barrier
    ds_read_b32 v85, v84
    s_waitcnt lgkmcnt(0)
    v_readfirstlane_b32 s4, v85
    s_cmp_lg_u32 s4, 0
    s_cbranch_scc1 k2_slow
    ''')
    stamp_out(a,opt,range(10),'s[10:11]',1)
    a('''
k2_end:
    s_endpgm
k2_red:
    s_nop 1
    ''')
    for r in range(16,24): a(f'v_add_f32_dpp v{r}, v{r}, v{r} row_ror:8 row_mask:0xf bank_mask:0xf')
    for op in ('v_permlane16_swap_b32','v_permlane32_swap_b32'):
        for r in range(8): a(f'v_mov_b32 v{68+r}, v{16+r}')
        a('s_nop 1')
        for r in range(8): a(f'{op} v{68+r}, v{16+r}')
        for r in range(8): a(f'v_add_f32 v{16+r}, v{16+r}, v{68+r}')
    a('s_branch k2_epi')
    mainloop(a, True, opt)
    a('s_branch k2_fin')
    slow(a,opt)

def slow(a,opt):
    a(f'''
k2_slow:
    s_load_dwordx2 s[56:57], s[0:1], 40               ; w_b
    s_load_dwordx2 s[58:59], s[0:1], 64               ; w_v
    s_load_dwordx2 s[6:7], s[0:1], 48                 ; w_c
    s_add_u32 s{sOF}, s10, {WS_OFFS}
    s_addc_u32 s{sOF+1}, s11, 0
    s_mov_b32 s{sOF+2}, {128*1024}
    s_mov_b32 s{sOF+3}, 0x20000
    s_waitcnt vmcnt(0) lgkmcnt(0)
    s_barrier
    v_mov_b32 v116, 0
    v_mov_b32 v117, 0
    v_mov_b32 v118, 0
    v_mov_b32 v119, 0
    v_lshlrev_b32 v120, 4, v0
    ds_write_b128 v120, v[116:119]
    ds_write_b128 v120, v[116:119] offset:16384
    ds_write_b128 v120, v[116:119] offset:32768
    ds_write_b128 v120, v[116:119] offset:49152
    v_and_b32 v1, 63, v0
    v_and_b32 v2, 31, v1
    v_lshrrev_b32 v3, 5, v1
    v_cmp_eq_u32 vcc, 1, v3
    s_mov_b64 s[60:61], vcc
    v_mov_b32 v10, s56
    v_mov_b32 v11, s58
    v_cndmask_b32 v10, v10, v11, vcc
    v_mov_b32 v11, s57
    v_mov_b32 v12, s59
    v_cndmask_b32 v11, v11, v12, vcc
    s_lshl_b32 s4, s{sH}, 6
    v_lshl_add_u32 v8, v2, 1, s4                      ; 2*c
    v_add_u32 v9, 4096, v8
    v_add_co_u32 v10, vcc, v10, v9
    s_nop 1
    v_addc_co_u32 v11, vcc, 0, v11, vcc
    ''')
    for k in range(64):
        a(f'global_load_ushort v{32+k}, v[10:11], off offset:{k*128-4096}')
        if k==31: a('s_waitcnt vmcnt(0)')
    a(f'''
    global_load_ushort v13, v8, s[6:7]
    s_waitcnt vmcnt(0)
    ''')
    for k in range(64): a(f'v_lshlrev_b32 v{32+k}, 16, v{32+k}')
    a(f'''
    v_lshlrev_b32 v13, 16, v13                        ; wc[c]
    v_lshlrev_b32 v14, 2, v1                          ; lane*4
    v_lshlrev_b32 v15, 2, v2
    v_add_u32 v15, {L_A}, v15
    s_mov_b32 s62, {NLOG2E}
    s_mov_b32 s63, 0                                  ; chunk
    s_waitcnt lgkmcnt(0)
    s_barrier
k2_sl_chunk:
    s_and_b32 s4, s63, 7
    s_lshl_b32 s4, s4, 7
    s_lshr_b32 s5, s63, 3
    s_lshl_b32 s5, s5, 2
    s_add_u32 s4, s4, s5
    s_lshl_b32 s5, s{sBK}, 10
    s_add_u32 s4, s4, s5
    s_add_u32 s5, s4, 1024
    s_buffer_load_dword s48, {sr(sOF,4)}, s4
    s_buffer_load_dword s49, {sr(sOF,4)}, s5
    s_add_u32 s5, s63, 1
    s_mul_i32 s5, s5, {CH}
    s_waitcnt lgkmcnt(0)
    s_and_b32 s48, s48, 0xffffff
    s_and_b32 s49, s49, 0xffffff
    s_cmp_eq_u32 s{sBK}, 127
    s_cselect_b32 s49, s5, s49
k2_sl_blk:
    s_cmp_ge_u32 s48, s49
    s_cbranch_scc1 k2_sl_next
    v_add_u32 v18, s48, v1
    buffer_load_ubyte v16, v18, {sr(sRB,4)}, 0 offen
    buffer_load_dword v17, v18, {sr(sRD,4)}, 0 idxen
    v_cmp_gt_u32 vcc, s49, v18
    s_mov_b64 s[50:51], vcc
    s_waitcnt vmcnt(0)
    v_and_b32 v18, 15, v16
    v_cmp_eq_u32 vcc, s{sW}, v18
    s_and_b64 s[50:51], s[50:51], vcc
k2_sl_edge:
    s_cmp_eq_u64 s[50:51], 0
    s_cbranch_scc1 k2_sl_bend
    s_ff1_i32_b64 s4, s[50:51]
    s_bitset0_b64 s[50:51], s4
    v_readlane_b32 s52, v16, s4                       ; dl
    v_readlane_b32 s53, v17, s4                       ; rec
    s_nop 3
    s_and_b32 s4, s53, 0xffff
    s_lshl_b32 s4, s4, 7
    s_add_u32 s5, s4, 64
    s_and_b32 s53, s53, 0xffff0000                    ; e
    s_buffer_load_dwordx16 s[72:87], {sr(sX,4)}, s4
    s_mul_i32 s40, s52, {AS}
    v_add_u32 v19, s40, v15
    ds_read_b32 v20, v19
    s_lshl_b32 s40, s52, 8
    v_add_u32 v21, s40, v14
    ds_read_b32 v22, v21                              ; accumulator
    v_mov_b32 v23, 0
    s_waitcnt lgkmcnt(0)
    ''')
    for hlf in range(2):
        for i in range(16):
            k=32+hlf*32+2*i
            a(f'''
            s_lshl_b32 s40, s{72+i}, 16
            s_and_b32 s41, s{72+i}, 0xffff0000
            v_fmac_f32 v23, s40, v{k}
            v_fmac_f32 v23, s41, v{k+1}
            ''')
        if hlf==0:
            a(f'''
            s_buffer_load_dwordx16 s[72:87], {sr(sX,4)}, s5
            s_waitcnt lgkmcnt(0)
            ''')
    a(f'''
    s_cmp_lg_u32 s64, 0
    s_cbranch_scc1 k2_sl_raw
    v_log_f32 v20, v20
    s_nop 0
    v_add_f32 v20, {hex(f2u(60.0))}, v20
k2_sl_raw:
    v_fma_f32 v24, s53, v13, v23
    v_fma_f32 v24, v24, s62, v20
    v_exp_f32 v24, v24
    s_nop 0
    v_add_f32 v24, 1.0, v24
    v_rcp_f32 v24, v24
    s_nop 0
    v_mov_b32 v25, v24
    s_nop 1
    v_permlane32_swap_b32 v24, v25
    v_cndmask_b32 v23, 1.0, v23, s[60:61]
    v_fmac_f32 v22, v24, v23
    ds_write_b32 v21, v22
    s_waitcnt lgkmcnt(0)
    s_branch k2_sl_edge
k2_sl_bend:
    s_add_u32 s48, s48, 64
    s_branch k2_sl_blk
k2_sl_next:
    s_add_u32 s63, s63, 1
    s_cmp_lt_u32 s63, {NCH}
    s_cbranch_scc1 k2_sl_chunk
    ; outputs
    s_mov_b32 s52, s{sW}
    s_lshl_b32 s53, s{sBK}, 7
k2_sl_out:
    s_lshl_b32 s40, s52, 8
    v_add_u32 v21, s40, v14
    ds_read_b32 v22, v21
    s_mul_i32 s40, s52, {AS}
    v_add_u32 v19, s40, v15
    ds_read_b32 v20, v19 offset:{L_U-L_A}
    s_lshl_b32 s40, s52, 14
    s_add_u32 s40, s40, s53
    v_add_u32 v26, s40, v8
    buffer_load_ushort v27, v26, {sr(sX,4)}, 0 offen
    s_waitcnt vmcnt(0) lgkmcnt(0)
    v_mov_b32 v25, v22
    s_nop 1
    v_permlane32_swap_b32 v22, v25
    v_lshlrev_b32 v27, 16, v27
    v_add_f32 v22, {hex(f2u(1e-6))}, v22
    v_rcp_f32 v22, v22
    s_nop 0
    v_fma_f32 v20, v25, v22, v20
    v_mul_f32 v28, 0, v20
    v_cmp_lt_f32 vcc, 0, v20
    s_nop 1
    v_cndmask_b32 v20, v28, v20, vcc
    v_add_f32 v20, v20, v27
    v_cvt_pk_bf16_f32 v20, v20, v20
    buffer_store_short v20, v26, {sr(sO,4)}, 0 offen
    s_add_u32 s52, s52, 16
    s_cmp_lt_u32 s52, 196
    s_cbranch_scc1 k2_sl_out
    s_endpgm
    ''')

HEADER = open('standalone__edge_featured_mpnn_gatedgcn__graph.s.ref').read().split('; Override launch')[0]

def desc(name, vg, sg):
    return f'''.p2align 6
.amdhsa_kernel {name}
  .amdhsa_next_free_vgpr {vg}
  .amdhsa_next_free_sgpr {sg}
  .amdhsa_accum_offset {(vg+3)//4*4}
  .amdhsa_group_segment_fixed_size 0
  .amdhsa_kernarg_size 96
  .amdhsa_user_sgpr_count 2
  .amdhsa_user_sgpr_kernarg_segment_ptr 1
  .amdhsa_system_sgpr_workgroup_id_x 1
.end_amdhsa_kernel
'''

def build(opt):
    out = HEADER
    X='; @launch kernel=k3_kernel grid=(256,1,1) block=(64,1,1) lds=0\n'
    out += X*opt.get('pre',0)
    out += f'; @launch kernel=k1_kernel grid=({K1_GRID},1,1) block=(512,1,1) lds={L1_SIZE}\n'
    out += X*opt.get('mid',0)
    out += f'; @launch kernel=k2_kernel grid=(256,1,1) block=(1024,1,1) lds={L2_SIZE}\n'
    out += '.amdgcn_target "amdgcn-amd-amdhsa--gfx950"\n.text\n'
    for name, fn in (('k1_kernel',k1),('k2_kernel',k2)):
        a=Asm(); fn(a,opt)
        out += f'.globl {name}\n.p2align 8\n.type {name},@function\n' + a.text()
    ex = opt.get('pre') or opt.get('mid')
    if ex: out += '.globl k3_kernel\n.p2align 8\n.type k3_kernel,@function\nk3_kernel:\n    s_endpgm\n'
    out += '.section .rodata,"a"\n'
    if ex: out += desc('k3_kernel', 8, 16)
    ts = opt.get('ts')
    out += desc('k1_kernel', 128 if ts else 96, 96 if ts else 40)
    out += desc('k2_kernel', 128, 96)
    return out

if __name__=='__main__':
    opt={}
    outp='standalone__edge_featured_mpnn_gatedgcn__graph.s'
    for x in sys.argv[1:]:
        k,v=x.split('=',1)
        if k=='o': outp=v
        else: opt[k]= int(v) if v.lstrip('-').isdigit() else v
    open(outp,'w').write(build(opt))
```

```python
import sys, struct

def f2u(x): return struct.unpack('<I', struct.pack('<f', x))[0]

N=25000; E=800000
NCH=250; CH=3200
TH=0x310000; DUMMY=25024; TROWS=25088
WS_RECD=0x700000; WS_RECB=0xA20000; WS_OFFS=0xB00000; WS_WF=0xB40000; WS_TS=0xC00000
NLOG2E=f2u(-1.4426950408889634)
K60=f2u(2.0**-60)
EPS60=f2u(1e-6*2.0**60)
EPS60_8=f2u(1e-6*2.0**57)

class Asm:
    def __init__(s): s.l=[]
    def __call__(s, t):
        for ln in t.strip('\n').split('\n'):
            if not ln.strip(): continue
            s.l.append(ln.strip() if ln.strip().endswith(':') else '    '+ln.strip())
    def text(s): return '\n'.join(s.l)+'\n'

def vr(a,n): return f'v[{a}:{a+n-1}]'
def sr(a,n): return f's[{a}:{a+n-1}]'

def scan64(a, v):
    for d in ('row_shr:1 row_mask:0xf','row_shr:2 row_mask:0xf','row_shr:4 row_mask:0xf','row_shr:8 row_mask:0xf',
              'row_bcast:15 row_mask:0xa','row_bcast:31 row_mask:0xc'):
        a('s_nop 1')
        a(f'v_add_u32_dpp v{v}, v{v}, v{v} {d} bank_mask:0xf')

TSB=72
def stamp(a, opt, idx, clk=False):
    if not opt.get('ts'): return
    a(f"{'s_memtime' if clk else 's_memrealtime'} s[{TSB+2*idx}:{TSB+2*idx+1}]")
def stamp_out(a, opt, idxs, ws, kern):
    if not opt.get('ts'): return
    if opt.get('amp') is not None:
        L=f'amp_{len(a.l)}'
        if kern==0:
            a(f'''
            s_mov_b64 exec, -1
            s_waitcnt lgkmcnt(0)
            s_cmp_lg_u32 s2, {opt.get('dbgk1',0)}
            s_cbranch_scc1 {L}
            v_cmp_eq_u32 vcc, 0, v0
            s_mov_b64 exec, vcc
            s_cbranch_execz {L}
            v_mov_b32 v125, {WS_TS}
            ''')
            for i in idxs:
                a(f'''
                v_mov_b32 v126, s{TSB+2*i}
                global_store_dword v125, v126, {ws} offset:{4*i}
                s_nop 1
                ''')
            a(L+':')
            return
        lo,hi=[int(x) for x in str(opt['amp']).split('_')]
        reg=lambda i: f's{48+i}' if i<8 else f's{TSB+2*(i-8)}'
        a(f'''
        s_cmp_lg_u32 s2, {opt.get('dbgwg',0)}
        s_cbranch_scc1 {L}
        s_cmp_lg_u32 s34, {opt.get('dbgw',0)}
        s_cbranch_scc1 {L}
        s_add_u32 s4, s10, {WS_TS}
        s_addc_u32 s5, s11, 0
        s_load_dwordx8 s[48:55], s[4:5], 0
        s_load_dword s60, s[4:5], 4096
        s_waitcnt lgkmcnt(0)
        v_mov_b32 v125, {WS_TS+4096}
        v_mov_b32 v126, 0x5eed1234
        global_store_dword v125, v126, s[10:11]
        s_cmp_eq_u32 s60, 0x5eed1234
        {'s_cbranch_scc1' if opt.get('pop','c')=='c' else 's_cbranch_scc0'} {L}
        s_sub_u32 s56, {reg(hi)}, {reg(lo)}
        s_lshr_b32 s56, s56, {opt.get('ampsh',0)}
        s_min_u32 s56, s56, {opt.get('ampmax',4000)}
        s_mul_i32 s56, s56, {opt.get('ampk',10)}
        s_add_u32 s56, s56, {opt.get('ampb',4000)}
        s_mov_b32 s57, 200000
{L}_l:
        s_memrealtime s[58:59]
        s_waitcnt lgkmcnt(0)
        s_sub_u32 s58, s58, s48
        s_cmp_ge_u32 s58, s56
        s_cbranch_scc1 {L}
        s_sub_u32 s57, s57, 1
        s_cmp_lg_u32 s57, 0
        s_cbranch_scc1 {L}_l
{L}:
        ''')
        return
    if opt.get('dbg') and kern==1:
        L=f'dbg_{len(a.l)}'
        a(f'''
        s_mov_b64 exec, -1
        s_load_dwordx2 s[66:67], s[0:1], 80
        s_add_u32 s4, s10, {WS_TS + opt.get('dbgk1',0)*2048}
        s_addc_u32 s5, s11, 0
        s_load_dwordx16 s[48:63], s[4:5], 0
        s_waitcnt lgkmcnt(0)
        s_cmp_lg_u32 s2, {opt.get('dbgwg',0)}
        s_cbranch_scc1 {L}
        v_cmp_eq_u32 vcc, {opt.get('dbgt',0)}, v0
        s_mov_b64 exec, vcc
        s_cbranch_execz {L}
        v_mov_b32 v125, 0
        ''')
        for i in list(idxs)[:8]:
            a(f'''
            v_mov_b32 v126, s{TSB+2*i}
            v_mov_b32 v127, s{48+2*i}
            v_subrev_u32 v126, s48, v126
            v_subrev_u32 v127, s48, v127
            global_store_dword v125, v126, s[66:67] offset:{4*i + 32}
            global_store_dword v125, v127, s[66:67] offset:{4*i}
            s_nop 1
            ''')
        a(L+':')
        return
    a(f'''
    s_mov_b64 exec, -1
    s_waitcnt lgkmcnt(0)
    v_lshrrev_b32 v125, 6, v0
    v_lshlrev_b32 v125, 6, v125
    s_lshl_b32 s69, s2, 10
    s_add_u32 s69, s69, {WS_TS + kern*0x100000}
    v_add_u32 v125, s69, v125
    s_mov_b64 exec, 1
    ''')
    idxs=list(idxs)
    for i in range(16): a(f'v_mov_b32 v{96+i}, ' + (f's{TSB+2*i}' if i in idxs else '0'))
    for q in range((max(idxs)+4)//4): a(f'global_store_dwordx4 v125, {vr(96+4*q,4)}, {ws} offset:{16*q}')

K1_B0=200; K1_GRID=456
L1_HIST=16384; L1_OFFL=18432; L1_SRC=20480; L1_E=L1_SRC+13312
L1_X=0; L1_O=16384; L1_WL=49152; L1_SIZE=49152+4*4128
WFH=8448

def k1(a, opt):
    st = opt.get('k1store','')
    stt = opt.get('k1tstore',st)
    ld = opt.get('k1load','')
    xl = opt.get('k1xload','')
    a('k1_kernel:')
    stamp(a,opt,0)
    if opt.get('codepf',1):
        a(f"""
        s_cmp_ge_u32 s2, 8
        s_cbranch_scc1 k1_npf
        v_cmp_le_u32 vcc, {opt.get('pft',448)}, v0
        s_cbranch_vccz k1_npf
        s_getpc_b64 s[32:33]
k1_pc:
        v_and_b32 v60, 63, v0
        v_lshlrev_b32 v60, 7, v60
        v_add_u32 v61, 0x2000, v60
        v_min_u32 v61, k2_slow-k1_pc, v61
        global_load_dword v60, v60, s[32:33]
        global_load_dword v61, v61, s[32:33]
k1_npf:
        """)
    if opt.get('binfirst'):
        a(f"""
        s_cmp_ge_u32 s2, {K1_GRID}
        s_cbranch_scc1 k1_end
        s_add_u32 s2, s2, {K1_B0}
        s_cmp_ge_u32 s2, {K1_GRID}
        s_cselect_b32 s3, {K1_GRID}, 0
        s_sub_u32 s2, s2, s3
        """)
    a(f"""
    s_cmp_lt_u32 s2, {K1_B0}
    s_cbranch_scc1 k1_gemm
    s_sub_u32 s3, s2, {K1_B0}                 ; chunk
    s_cmp_ge_u32 s3, {NCH}
    s_cbranch_scc1 k1_wf
    s_setprio {opt.get('binprio',3)}
    s_load_dwordx2 s[8:9], s[0:1], 24         ; dst
    s_load_dwordx4 s[4:7], s[0:1], 8
    s_load_dwordx2 s[10:11], s[0:1], 88       ; ws
    v_lshlrev_b32 v3, 2, v0
    v_mov_b32 v4, 0
    ds_write_b32 v3, v4 offset:{L1_HIST}
    v_lshlrev_b32 v1, 5, v0
    s_mul_i32 s12, s3, {CH*4}
    v_add_u32 v1, s12, v1
    v_lshrrev_b32 v2, 1, v1
    v_mov_b32 v5, 1
    v_and_b32 v6, 63, v0
    v_lshlrev_b32 v6, 3, v6
    s_mov_b32 s16, 0xffff0000
    s_movk_i32 s17, 0x1fc
    v_cmp_gt_u32 vcc, 400, v0
    s_mov_b64 s[14:15], vcc
    s_mov_b64 exec, vcc
    s_waitcnt lgkmcnt(0)
    s_cbranch_execz k1_b1
    global_load_dwordx4 v[8:11], v1, s[8:9] {ld}
    global_load_dwordx4 v[12:15], v1, s[8:9] offset:16 {ld}
k1_b1:
    s_barrier
    """)
    stamp(a,opt,1)
    a(f"""
    s_cbranch_execnz k1_b1w
    s_mov_b64 exec, -1
    s_add_u32 s20, s6, s12
    s_addc_u32 s21, s7, 0
    s_movk_i32 s22, {CH*4}
    s_mov_b32 s23, 0x20000
    s_lshr_b32 s13, s12, 1
    s_add_u32 s24, s4, s13
    s_addc_u32 s25, s5, 0
    s_movk_i32 s26, {CH*2}
    s_mov_b32 s27, 0x20000
    v_lshlrev_b32 v1, 1, v6
    """)
    for q in range(4):
        a(f's_movk_i32 m0, {L1_SRC+4096*q}' if L1_SRC+4096*q<32768 else f's_mov_b32 m0, {L1_SRC+4096*q}')
        if q: a('v_add_u32 v1, 0x1000, v1')
        else: a('s_nop 0')
        for j in range(4 if q<3 else 1):
            a(f'buffer_load_dwordx4 v1, s[20:23], 0 offen offset:{1024*j} {ld} lds')
            if q==0 and j==0 and opt.get('pace',1): a('s_waitcnt vmcnt(0)')
    a('v_lshlrev_b32 v1, 1, v6')
    for q in range(2):
        a(f's_mov_b32 m0, {L1_E+4096*q}')
        if q: a('v_add_u32 v1, 0x1000, v1')
        else: a('s_nop 0')
        for j in range(4 if q<1 else 3): a(f'buffer_load_dwordx4 v1, s[24:27], 0 offen offset:{1024*j} {ld} lds')
    a(f"""
    s_branch k1_b2
k1_b1w:
    s_waitcnt vmcnt(0)
    """)
    stamp(a,opt,2)
    for i in range(8):
        a(f"""
        v_lshlrev_b32 v{28+i}, 2, v{8+i}
        v_and_b32 v{28+i}, s17, v{28+i}
        ds_add_rtn_u32 v{36+i}, v{28+i}, v5 offset:{L1_HIST}
        """)
    a(f"""
k1_b2:
    s_mov_b64 exec, -1
    s_waitcnt lgkmcnt(0)
    s_barrier
    ds_read_b64 v[44:45], v6 offset:{L1_HIST}
    """)
    stamp(a,opt,3)
    for i in range(8): a(f'v_lshrrev_b32 v{8+i}, 7, v{8+i}')
    a(f"""
    s_waitcnt lgkmcnt(0)
    v_add_u32 v46, v44, v45
    v_mov_b32 v47, v46
    """)
    scan64(a,47)
    a(f"""
    v_sub_u32 v48, v47, v46
    v_add_u32 v49, v48, v44
    ds_write_b64 v6, v[48:49] offset:{L1_OFFL}
    s_mov_b64 exec, s[14:15]
    s_cbranch_execz k1_b3
    """)
    for i in range(8): a(f'ds_read_b32 v{28+i}, v{28+i} offset:{L1_OFFL}')
    for i in range(8):
        a(f"""
        s_waitcnt lgkmcnt(7)
        v_add_u32 v{28+i}, v{28+i}, v{36+i}
        v_lshlrev_b32 v{36+i}, 2, v{28+i}
        ds_write_b8 v{28+i}, v{8+i} offset:{CH*4}
        """)
    a(f"""
    v_lshlrev_b32 v1, 5, v0
    v_lshlrev_b32 v2, 4, v0
    s_barrier
    {f's_memrealtime s[{TSB+14}:{TSB+15}]' if opt.get('ts') else ''}
    ds_read_b128 v[24:27], v2 offset:{L1_E}
    ds_read_b128 v[16:19], v1 offset:{L1_SRC}
    ds_read_b128 v[20:23], v1 offset:{L1_SRC+16}
    s_waitcnt lgkmcnt(1)
    """)
    for i in range(8):
        if i==4: a('s_waitcnt lgkmcnt(4)')
        if i%2==0: a(f'v_lshl_or_b32 v{16+i}, v{24+i//2}, 16, v{16+i}')
        else:      a(f'v_and_or_b32 v{16+i}, v{24+i//2}, s16, v{16+i}')
        a(f'ds_write_b32 v{36+i}, v{16+i}')
    a(f"""
    s_branch k1_b4
k1_b3:
    s_mov_b64 exec, -1
    s_mul_i32 s13, s3, {CH}
    v_min_u32 v44, 255, v44
    v_min_u32 v45, 255, v45
    v_add_u32 v48, s13, v48
    v_add_u32 v49, s13, v49
    v_lshl_or_b32 v50, v44, 24, v48
    v_lshl_or_b32 v51, v45, 24, v49
    s_and_b32 s12, s3, 7
    s_lshl_b32 s12, s12, 7
    s_lshr_b32 s13, s3, 3
    s_lshl_b32 s13, s13, 2
    s_add_u32 s12, s12, s13
    s_add_u32 s12, s12, {WS_OFFS}
    v_lshl_add_u32 v52, v6, 8, s12
    """)
    if opt.get('xpf',1):
        a(f"""
        s_load_dwordx2 s[20:21], s[0:1], 0
        s_lshr_b32 s13, s3, 3
        s_mul_i32 s13, s13, 98
        v_lshrrev_b32 v53, 3, v6
        v_add_u32 v53, s13, v53
        v_add_u32 v54, 34, v53
        s_add_u32 s13, s3, 4
        s_and_b32 s13, s13, 7
        s_lshl_b32 s13, s13, 12
        v_lshrrev_b32 v55, 5, v53
        v_and_b32 v53, 31, v53
        v_lshlrev_b32 v53, 7, v53
        v_lshl_add_u32 v53, v55, 15, v53
        v_add_u32 v53, s13, v53
        v_lshrrev_b32 v55, 5, v54
        v_and_b32 v54, 31, v54
        v_lshlrev_b32 v54, 7, v54
        v_lshl_add_u32 v54, v55, 15, v54
        v_add_u32 v54, s13, v54
        s_mov_b32 s22, {N*128}
        s_mov_b32 s23, 0x20000
        s_waitcnt lgkmcnt(0)
        """)
    a(f"""
    s_waitcnt vmcnt(0)
    s_barrier
    """)
    if opt.get('xpf',1):
        a(f"""
        buffer_load_dword v53, v53, s[20:23], 0 offen
        buffer_load_dword v54, v54, s[20:23], 0 offen
        """)
    a(f"""
    global_store_dword v52, v50, s[10:11]
    global_store_dword v52, v51, s[10:11] offset:1024
k1_b4:
    s_mov_b64 exec, -1
    v_lshlrev_b32 v1, 4, v0
    s_mul_i32 s12, s3, {CH*4}
    s_add_u32 s12, s12, {WS_RECD}
    s_mul_i32 s13, s3, {CH}
    s_add_u32 s13, s13, {WS_RECB-CH*4+8192}
    v_add_u32 v2, s12, v1
    v_add_u32 v3, 8192, v2
    v_add_u32 v4, s13, v1
    v_cmp_gt_u32 vcc, {CH*4//16-512}, v0
    s_nop 1
    v_cndmask_b32 v3, v4, v3, vcc
    v_cmp_gt_u32 vcc, {CH*5//16-512}, v0
    s_waitcnt lgkmcnt(0)
    s_barrier
    """)
    stamp(a,opt,4)
    a(f"""
    ds_read_b128 v[8:11], v1
    ds_read_b128 v[12:15], v1 offset:8192
    s_waitcnt lgkmcnt(1)
    global_store_dwordx4 v2, v[8:11], s[10:11] {st}
    s_mov_b64 exec, vcc
    s_waitcnt lgkmcnt(0)
    global_store_dwordx4 v3, v[12:15], s[10:11] {st}
    """)
    if opt.get('ts'):
        stamp(a,opt,5)
        a('s_waitcnt vmcnt(0)')
        stamp(a,opt,6)
        stamp_out(a,opt,range(8),'s[10:11]',0)
    a('s_endpgm')

    a(f"""
k1_wf:
    s_cmp_ge_u32 s3, 256
    s_cbranch_scc1 k1_end
    s_load_dwordx2 s[4:5], s[0:1], 32         ; w_a
    s_load_dwordx4 s[16:19], s[0:1], 48       ; w_c, w_u
    s_load_dwordx2 s[10:11], s[0:1], 88       ; ws
    v_lshrrev_b32 v1, 6, v0
    v_and_b32 v2, 63, v0                      ; lane
    v_readfirstlane_b32 s12, v1
    v_and_b32 v3, 31, v0
    v_lshrrev_b32 v4, 5, v2                   ; kh
    v_lshlrev_b32 v3, 1, v3
    v_lshl_add_u32 v3, v4, 10, v3             ; kh*8*128 + n*2
    s_lshr_b32 s13, s12, 2
    s_lshl_b32 s13, s13, 6
    s_and_b32 s14, s12, 1
    s_lshl_b32 s14, s14, 12                   ; 2*(w&1)*2048
    s_add_u32 s13, s13, s14
    v_add_u32 v3, s13, v3
    s_and_b32 s15, s3, 7
    s_lshl_b32 s15, s15, 7
    s_add_u32 s15, s15, {WS_OFFS+31*4}
    v_lshl_add_u32 v5, v0, 10, s15
    v_mov_b32 v6, 0
    s_waitcnt lgkmcnt(0)
    s_cmp_ge_u32 s12, 2
    s_cbranch_scc1 k1_wf1
    global_store_dword v5, v6, s[10:11]
k1_wf1:
    s_cmp_lg_u32 s3, {NCH}
    s_cbranch_scc1 k1_end
    s_bitcmp1_b32 s12, 1
    s_cselect_b32 s4, s18, s4
    s_cselect_b32 s5, s19, s5
    """)
    for q in range(2):
        for j in range(8):
            a(f'global_load_ushort v{8+q*8+j}, v3, s[4:5] offset:{q*2048+j*128}')
    a(f"""
    v_lshlrev_b32 v32, 1, v2
    global_load_ushort v33, v32, s[16:17]
    s_lshr_b32 s13, s12, 2
    s_mul_i32 s13, s13, {WFH-8192}
    s_lshl_b32 s14, s12, 11
    s_add_u32 s13, s13, s14
    s_add_u32 s13, s13, {WS_WF}
    v_lshlrev_b32 v5, 4, v2
    v_add_u32 v5, s13, v5
    s_waitcnt vmcnt(0)
    """)
    for q in range(2):
        for i in range(4):
            a(f'v_lshl_or_b32 v{24+q*4+i}, v{8+q*8+2*i+1}, 16, v{8+q*8+2*i}')
    a(f"""
    global_store_dwordx4 v5, v[24:27], s[10:11]
    global_store_dwordx4 v5, v[28:31], s[10:11] offset:1024
    s_cmp_lg_u32 s12, 0
    s_cbranch_scc1 k1_end
    v_and_b32 v6, 31, v0
    v_lshlrev_b32 v6, 2, v6
    s_mov_b32 s13, {TH}
    v_mad_u32_u24 v7, v4, s13, v6
    v_add_u32 v7, {DUMMY*128}, v7
    v_mov_b32 v8, 0x7c00
    global_store_dword v7, v8, s[10:11]
    s_movk_i32 s13, {WFH}
    v_mad_u32_u24 v6, v4, s13, v6
    v_add_u32 v6, {WS_WF+8192}, v6
    v_lshlrev_b32 v33, 16, v33
    v_mul_f32 v33, {NLOG2E}, v33
    global_store_dword v6, v33, s[10:11]
    s_endpgm
    """)

    a(f"""
k1_gemm:
    s_load_dwordx2 s[4:5], s[0:1], 0          ; x
    s_load_dwordx2 s[12:13], s[0:1], 40       ; w_b
    s_load_dwordx2 s[28:29], s[0:1], 64       ; w_v
    s_load_dwordx2 s[10:11], s[0:1], 88       ; ws
    v_lshrrev_b32 v1, 6, v0
    v_and_b32 v2, 63, v0                      ; lane
    v_readfirstlane_b32 s16, v1               ; wave
    s_lshr_b32 s17, s2, 3
    s_lshl_b32 s17, s17, 2
    s_lshr_b32 s22, s16, 1
    s_add_u32 s17, s17, s22
    s_lshl_b32 s17, s17, 3
    s_and_b32 s18, s2, 7
    s_add_u32 s17, s17, s18                   ; tile
    s_and_b32 s18, s16, 1                     ; half
    s_lshl_b32 s19, s17, 12                   ; tile*32*128
    v_lshrrev_b32 v3, 4, v2                   ; r>>1
    v_xor_b32 v5, v3, v2
    v_and_b32 v5, 7, v5
    v_lshlrev_b32 v5, 4, v5
    v_and_b32 v4, 56, v2
    v_lshl_add_u32 v5, v4, 4, v5
    s_lshl_b32 s20, s18, 11
    s_add_u32 s20, s20, s19
    v_add_u32 v5, s20, v5                     ; q even
    v_xor_b32 v14, 64, v5                     ; q odd
    s_lshl_b32 s21, s16, 11
    v_lshrrev_b32 v8, 2, v2
    v_and_b32 v9, 3, v2
    v_lshlrev_b32 v9, 4, v9
    v_lshl_add_u32 v8, v8, 7, v9
    s_lshl_b32 s20, s22, 11
    s_lshl_b32 s23, s18, 6
    s_add_u32 s20, s20, s23
    v_add_u32 v8, s20, v8
    s_mul_i32 s27, s18, {2*4128}
    s_add_u32 s27, s27, {L1_WL}
    s_lshl_b32 s20, s22, 10
    s_add_u32 s20, s20, s27
    s_mov_b32 s6, {N*128}
    s_mov_b32 s7, 0x20000
    s_movk_i32 s14, 0x2000
    s_mov_b32 s15, 0x20000
    s_movk_i32 s30, 0x2000
    s_mov_b32 s31, 0x20000
    s_mov_b32 m0, s21
    s_waitcnt lgkmcnt(0)
    buffer_load_dwordx4 v5, s[4:7], 0 offen {xl} lds
    buffer_load_dwordx4 v14, s[4:7], 0 offen offset:1024 {xl} lds
    s_mov_b32 m0, s20
    s_add_u32 s20, s20, 4128
    buffer_load_dwordx4 v8, s[12:15], 0 offen lds
    s_mov_b32 m0, s20
    s_nop 0
    buffer_load_dwordx4 v8, s[28:31], 0 offen lds
    """)
    stamp(a,opt,1)
    a(f"""
    """)
    a(f"""
    s_mov_b32 s23, {NLOG2E}
    s_mov_b32 s24, 0x8000
    s_mov_b32 s25, 0xffff0000
    v_lshrrev_b32 v4, 5, v2                   ; kh
    v_and_b32 v7, 1, v3
    s_movk_i32 s20, 4128
    v_mul_u32_u24 v10, s20, v7
    v_bfe_u32 v6, v2, 2, 2
    v_lshl_add_u32 v6, v4, 3, v6
    v_lshl_add_u32 v10, v6, 6, v10
    v_lshrrev_b32 v9, 1, v9
    v_add3_u32 v10, v10, v9, s27
    s_lshl_b32 s21, s22, 12
    v_and_b32 v3, 31, v2
    v_bfe_u32 v5, v2, 1, 3
    v_xor_b32 v5, v5, v4
    v_lshlrev_b32 v5, 4, v5
    v_lshlrev_b32 v8, 7, v3                   ; n*128
    v_add3_u32 v5, v5, v8, s21
    v_xor_b32 v6, 32, v5
    v_xor_b32 v7, 64, v5
    v_xor_b32 v14, 96, v5
    s_lshl_b32 s27, s16, 12
    s_add_u32 s27, s27, {L1_O}
    v_and_b32 v15, 7, v2
    v_xor_b32 v15, v15, v4
    v_lshl_add_u32 v8, v15, 4, v8
    v_add_u32 v8, s27, v8
    v_lshrrev_b32 v1, 3, v2
    v_xor_b32 v15, v1, v2
    v_and_b32 v15, 7, v15
    v_lshlrev_b32 v15, 4, v15
    v_lshl_add_u32 v15, v1, 7, v15
    v_add_u32 v15, s27, v15
    s_mul_i32 s26, s18, {TH}
    s_add_u32 s26, s26, s19
    v_lshl_add_u32 v9, v2, 4, s26
    v_mov_b32 v12, 0
    v_mov_b32 v13, 0
    {'s_waitcnt vmcnt(2)' if opt.get('ts') else ''}
    {f's_memrealtime s[{TSB+14}:{TSB+15}]' if opt.get('ts') else ''}
    s_waitcnt vmcnt(0)
    s_barrier
    s_cmp_ge_u32 s17, 782
    s_cbranch_scc1 k1_end
    """)
    stamp(a,opt,2)
    xa=[5,6,7,14]
    for s_ in range(4):
        a(f'ds_read_b128 {vr(16+4*s_,4)}, v{xa[s_]}')
        for T in range(2):
            for u in range(2):
                a(f'ds_read_b64_tr_b16 {vr(32+16*T+4*s_+2*u,2)}, v10 offset:{(16*s_+4*u)*64+32*T}')
    DE=64; DO=80
    for s_ in range(4):
        c1 = '0' if s_==0 else vr(DE,16)
        c2 = '0' if s_==0 else vr(DO,16)
        a(f's_waitcnt lgkmcnt({15-5*s_})')
        a(f'v_mfma_f32_32x32x16_bf16 {vr(DE,16)}, {vr(32+4*s_,4)}, {vr(16+4*s_,4)}, {c1}')
        a(f'v_mfma_f32_32x32x16_bf16 {vr(DO,16)}, {vr(48+4*s_,4)}, {vr(16+4*s_,4)}, {c2}')
    stamp(a,opt,3)
    a('s_nop 9')
    a('v_xor_b32 v5, 32, v8')
    a('v_xor_b32 v6, 64, v8')
    a('v_xor_b32 v7, 96, v8')
    Bs=[DE+r for r in range(8)]+[DO+r for r in range(8)]
    for b in Bs: a(f'v_mul_f32 v{b}, s23, v{b}')
    for i in range(0,16,2):
        a(f'v_max3_f32 v12, |v{Bs[i]}|, |v{Bs[i+1]}|, v12')
        a(f'v_max3_f32 v13, |v{Bs[i]+8}|, |v{Bs[i+1]+8}|, v13')
    for T in range(2):
        for g in range(2):
            for i in range(4):
                b=(DE if T==0 else DO)+4*g+i
                a(f"""
                v_cvt_f16_f32 v{b}, v{b}
                v_sad_u32 v{b+8}, v{b+8}, v{b}, s24
                v_and_or_b32 v{b+8}, v{b+8}, s25, v{b}
                """)
            a(f'ds_write_b128 v{[8,5,6,7][2*T+g]}, {vr((DE if T==0 else DO)+8+4*g,4)}')
    a(f"""
    ds_read_b128 v[32:35], v15
    ds_read_b128 v[36:39], v15 offset:1024
    ds_read_b128 v[40:43], v15 offset:2048
    ds_read_b128 v[44:47], v15 offset:3072
    v_cmp_lt_f32 vcc, {hex(f2u(60000.0))}, v12
    s_cbranch_vccnz k1_bad
    v_cmp_lt_f32 vcc, {hex(f2u(2.0**40))}, v13
    s_cbranch_vccnz k1_bad
    v_cmp_le_f32 vcc, {hex(f2u(2.0**-30))}, v13
    s_cbranch_vccnz k1_good
    v_cmp_neq_f32 vcc, 0, v13
    s_cbranch_vccnz k1_bad
k1_good:
    """)
    stamp(a,opt,4)
    for q in range(4):
        a(f"""
        s_waitcnt lgkmcnt({3-q})
        global_store_dwordx4 v9, {vr(32+4*q,4)}, s[10:11] offset:{1024*q} {stt}
        """)
    if opt.get('ts'):
        stamp(a,opt,5)
        a('s_waitcnt vmcnt(0)')
        stamp(a,opt,6)
        stamp_out(a,opt,range(8),'s[10:11]',0)
    a("""
    s_endpgm
k1_bad:
    v_mov_b32 v48, 0x7e00
    v_mov_b32 v49, 0x7e00
    v_mov_b32 v50, 0x7e00
    v_mov_b32 v51, 0x7e00
    """)
    for q in range(4):
        a(f'global_store_dwordx4 v9, v[48:51], s[10:11] offset:{1024*q}')
    a("""
k1_end:
    s_endpgm
    """)

CAP=80; RS=(CAP+3)*4
AS=144
L_CH=0; L_FLAG=256; L_PERM=272; L_FILL=1088; RB=1120
L_X=76928; L_WC=L_X+200*128; L_A=L_WC+256; L_U=L_A+196*AS; L2_SIZE=L_U+196*AS
assert L_PERM+196*4<=L_FILL and RB+196*RS+40<=L_FILL+65536 and RB+228*RS<=L_X and L_X%128==0 and L2_SIZE<=163840
sX=12; sO=16; sOF=20; sRD=24; sT=28; sRB=44
sBK=32; sH=33; sW=34; sK=36; sE=38
sM=48

def step(a, rs, modeB, opt, wait, ld=None, idx_off=None, e_off=None):
    G=60; P=68; S=72; W=76; WC=4; EA=8; AR=8; D=16; NN=20
    a(wait)
    ins=[]
    for c in range(4): ins.append(f'v_fma_mix_f32 v{G+c}, v48, v{WC+c}, v{rs+c} op_sel_hi:[0,0,1]')
    for c in range(4): ins.append(f'v_fma_mix_f32 v{G+4+c}, v49, v{WC+c}, v{rs+4+c} op_sel_hi:[0,0,1]')
    if not opt.get('nocomp'):
        if modeB:
            for q in range(4): ins.append(f'v_pk_add_f32 {vr(G+2*q,2)}, {vr(G+2*q,2)}, {vr(AR+2*(q&1),2)}')
        for c in (0,1,4,5,2,3,6,7): ins.append(f'v_exp_f32 v{G+c}, v{G+c}')
        for q in (0,2,1,3):
            m = sr(sK,2) if modeB else vr(EA+2*(q&1),2)
            ins.append(f'v_pk_fma_f32 {vr(G+2*q,2)}, {vr(G+2*q,2)}, {m}, {sr(sK,2)} clamp')
        ins += [f'v_pk_mul_f32 {vr(P,2)}, {vr(G,2)}, {vr(G+4,2)}',
            f'v_pk_mul_f32 {vr(P+2,2)}, {vr(G+2,2)}, {vr(G+6,2)}',
            f'v_pk_mul_f32 {vr(W,2)}, {vr(G+4,2)}, {vr(rs,2)}',
            f'v_rcp_f32 v{P}, v{P}',
            f'v_rcp_f32 v{P+1}, v{P+1}',
            f'v_pk_mul_f32 {vr(W+2,2)}, {vr(G+6,2)}, {vr(rs+2,2)}',
            f'v_rcp_f32 v{P+2}, v{P+2}',
            f'v_rcp_f32 v{P+3}, v{P+3}',
            f'v_pk_add_f32 {vr(S,2)}, {vr(G,2)}, {vr(G+4,2)}',
            f'v_pk_add_f32 {vr(S+2,2)}, {vr(G+2,2)}, {vr(G+6,2)}',
            f'v_pk_fma_f32 {vr(W,2)}, {vr(G,2)}, {vr(rs+4,2)}, {vr(W,2)}',
            f'v_pk_fma_f32 {vr(W+2,2)}, {vr(G+2,2)}, {vr(rs+6,2)}, {vr(W+2,2)}',
            f'v_pk_fma_f32 {vr(D,2)}, {vr(S,2)}, {vr(P,2)}, {vr(D,2)}',
            f'v_pk_fma_f32 {vr(D+2,2)}, {vr(S+2,2)}, {vr(P+2,2)}, {vr(D+2,2)}',
            f'v_pk_fma_f32 {vr(NN,2)}, {vr(W,2)}, {vr(P,2)}, {vr(NN,2)}',
            f'v_pk_fma_f32 {vr(NN+2,2)}, {vr(W+2,2)}, {vr(P+2,2)}, {vr(NN+2,2)}']
    mem=[]
    if ld is not None:
        mem += [(0,f'buffer_load_dwordx4 {vr(ld,4)}, v[50:51], {sr(sT,4)}, 0 idxen offen'),
                (0,f'buffer_load_dwordx4 {vr(ld+4,4)}, v[52:53], {sr(sT,4)}, 0 idxen offen')]
    p1 = opt.get('p1',8); p2=opt.get('p2',8)
    if idx_off is not None:
        mem += [(p1,f'ds_read_u16 v50, v54 offset:{idx_off}'),(p1,f'ds_read_u16 v52, v54 offset:{idx_off+4}')]
    if e_off is not None:
        mem += [(p2,f'ds_read_u16_d16_hi v48, v54 offset:{e_off+2}'),(p2,f'ds_read_u16_d16_hi v49, v54 offset:{e_off+6}')]
    for i in range(len(ins)+1):
        for p,m in mem:
            if min(p,len(ins))==i: a(m)
        if i<len(ins): a(ins[i])

RSET=[24,32,40,96]
def mainloop(a, modeB, opt):
    t = 'B' if modeB else 'A'
    NS=opt.get('ns',3); PD=NS-1
    a('.p2align 6')
    for u in range(NS):
        a(f'k2_loop{t}{u}:')
        step(a, RSET[u], modeB, opt, f's_waitcnt vmcnt({2*PD-2}) lgkmcnt(0)', ld=RSET[(u+PD)%NS], idx_off=(u+NS)*8, e_off=(u+1)*8)
    a(f"""
    v_add_u32 v54, {8*NS}, v54
    s_sub_u32 s40, s40, 1
    s_cmp_lg_u32 s40, s41
    s_cbranch_scc1 k2_loop{t}0
    s_cmp_eq_u32 s41, 0
    s_cbranch_scc1 k2_tail{t}
    s_mov_b32 s41, 0
    s_setprio 1
    s_branch k2_loop{t}0
k2_tail{t}:
    s_cmp_eq_u32 s54, 0
    s_cbranch_scc1 k2_tl{t}
    s_setprio 0
k2_tl{t}:
    """)
    for k in range(PD):
        step(a, RSET[k], modeB, opt, f's_waitcnt vmcnt({2*(PD-1-k)}) lgkmcnt(0)', e_off=(8*(k+1) if k<PD-1 else None))

def k2(a, opt):
    NS=opt.get('ns',3); PD=NS-1
    NSET=11; REC=16; DL=28; IX=40
    DPP=lambda k: f'row_newbcast:{k} row_mask:0xf bank_mask:0xf'
    a('k2_kernel:')
    stamp(a,opt,0)
    a(f"""
    s_cmp_ge_u32 s2, 256
    s_cbranch_scc1 k2_end
    s_load_dwordx2 s[10:11], s[0:1], 88               ; ws
    s_load_dwordx2 s[{sX}:{sX+1}], s[0:1], 0          ; x
    s_load_dwordx2 s[{sO}:{sO+1}], s[0:1], 72         ; out
    v_lshrrev_b32 v2, 6, v0
    v_and_b32 v1, 63, v0                              ; lane
    v_readfirstlane_b32 s{sW}, v2                     ; wave
    v_mov_b32 v116, {DUMMY}
    v_mov_b32 v117, {DUMMY}
    v_mov_b32 v118, {DUMMY}
    v_mov_b32 v119, {DUMMY}
    v_lshlrev_b32 v120, 4, v1
    v_lshl_add_u32 v120, v2, 12, v120
    ds_write_b128 v120, v[116:119] offset:{L_FILL}
    ds_write_b128 v120, v[116:119] offset:{L_FILL+1024}
    s_and_b32 s{sBK}, s2, 3
    s_lshl_b32 s{sBK}, s{sBK}, 5
    s_lshr_b32 s3, s2, 3
    s_add_u32 s{sBK}, s{sBK}, s3                      ; bucket
    s_bfe_u32 s{sH}, s2, 0x10002                      ; half
    v_lshrrev_b32 v3, 5, v1                           ; lane>>5
    v_and_b32 v2, 31, v1                              ; lane&31
    s_mov_b32 s{sX+2}, {N*128}
    s_mov_b32 s{sX+3}, 0x20000
    s_movk_i32 s{sOF+2}, 1024
    s_mov_b32 s{sOF+3}, 0x20000
    s_cmp_ge_u32 s{sW}, 12
    s_cbranch_scc1 k2_t0
    v_and_b32 v4, 15, v1
    v_mad_u32_u24 v4, v3, {NSET}, v4
    s_mul_i32 s4, s{sW}, {2*NSET}
    v_add_lshl_u32 v4, v4, s4, 2
    s_lshl_b32 s8, s{sBK}, 10
    s_add_u32 s8, s8, {WS_OFFS}
    s_waitcnt lgkmcnt(0)
    s_add_u32 s{sOF}, s10, s8
    s_addc_u32 s{sOF+1}, s11, 0
    buffer_load_dword v8, v4, {sr(sOF,4)}, 0 offen
k2_t1:
    """)
    stamp(a,opt,1)
    a(f"""
    ds_write_b128 v120, v[116:119] offset:{L_FILL+2048}
    ds_write_b128 v120, v[116:119] offset:{L_FILL+3072}
    s_movk_i32 s5, {RS}
    s_mul_i32 s8, s{sW}, 12
    v_mov_b32 v84, {RB}
    v_add_u32 v121, s8, v1
    v_mad_u32_u24 v122, v121, s5, v84
    v_add_u32 v123, {CAP*4+4-L_FILL}, v122
    v_lshrrev_b32 v123, 12, v123
    v_min_u32 v123, 15, v123
    v_cmp_eq_u32 s[48:49], s{sW}, v123
    v_cmp_gt_u32 vcc, 196, v121
    v_mov_b32 v123, 0x100000
    v_mov_b32 v114, 0
    v_cndmask_b32 v123, v123, v122, vcc
    v_cmp_gt_u32 vcc, 228, v121
    v_mov_b32 v115, 0
    s_and_b64 exec, vcc, s[48:49]
    ds_write_b32 v122, v123 offset:{CAP*4+4}
    s_mov_b64 exec, -1
    s_cmp_lg_u32 s{sW}, 0
    s_cbranch_scc1 k2_i1
    v_lshlrev_b32 v121, 3, v1
    ds_write_b64 v121, v[114:115]
k2_i1:
    s_add_u32 s{sRD}, s10, {WS_RECD}
    s_addc_u32 s{sRD+1}, s11, 0
    s_or_b32 s{sRD+1}, s{sRD+1}, 0x40000              ; stride 4
    s_mov_b32 s{sRD+2}, {E}
    s_mov_b32 s{sRD+3}, 0x20000
    s_add_u32 s{sRB}, s10, {WS_RECB}
    s_addc_u32 s{sRB+1}, s11, 0
    s_mov_b32 s{sRB+2}, {E}
    s_mov_b32 s{sRB+3}, 0x20000
    v_mov_b32 v5, 4
    v_mov_b32 v113, {L_FLAG}
    s_cmp_ge_u32 s{sW}, 12
    s_cbranch_scc1 k2_au
    v_not_b32 v124, v2
    v_lshlrev_b32 v124, 24, v124
    v_mov_b32 v6, {CAP*4+RB}
    v_add_u32 v{DL}, 196, v2
    """)
    for it in range(1,NSET+1): a(f'v_mov_b32 v{DL+it}, v{DL}')
    pre=opt.get('pre_sets',0)
    if pre==0:
        a("""
        s_waitcnt lgkmcnt(0)
        s_barrier
        """)
        stamp(a,opt,10)
    a('s_waitcnt vmcnt(0)')
    stamp(a,opt,2)
    a(f"""
    v_and_b32 v9, 0xffffff, v8
    v_cmp_le_u32 vcc, {33<<24}, v8
    s_and_b32 s40, vcc_lo, {(1<<NSET)-1}
    s_and_b32 s41, vcc_hi, {(1<<NSET)-1}
    """)
    g_=opt.get('bg',3); la=opt.get('la',2)
    prs=[tuple(range(i,min(i+g_,NSET+1))) for i in range(0,NSET+1,g_)]
    AX=52
    def issue(grp):
        for it in grp:
            if it<NSET:
                a(f"""
                v_add_co_u32_dpp v7, vcc, v8, v124 {DPP(it)}
                v_add_u32_dpp v{AX+(it&1)}, v9, v2 {DPP(it)}
                s_mov_b64 exec, vcc
                buffer_load_ubyte v{DL+it}, v{AX+(it&1)}, {sr(sRB,4)}, 0 offen
                buffer_load_dword v{REC+it}, v{AX+(it&1)}, {sr(sRD,4)}, 0 idxen
                s_mov_b64 exec, -1
                """)
            else:
                a(f"""
                s_cmp_eq_u64 s[40:41], 0
                s_cbranch_scc1 k2_r2_done
                s_mov_b32 s48, 0
k2_r2:
                s_ff1_i32_b64 s4, s[40:41]
                s_bitset0_b64 s[40:41], s4
                v_readlane_b32 s8, v8, s4
                s_mov_b64 exec, -1
                s_lshr_b32 s9, s8, 24
                s_sub_u32 s9, s9, 32
                s_and_b32 s8, s8, 0xffffff
                s_add_u32 s8, s8, 32
                s_sub_u32 s8, s8, s48
                v_add_u32 v{AX+2}, s8, v1
                s_bfm_b64 s[50:51], s9, s48
                s_add_u32 s48, s48, s9
                s_cmp_gt_u32 s48, 63
                s_cbranch_scc1 k2_r2_over
                s_mov_b64 exec, s[50:51]
                buffer_load_ubyte v{DL+NSET}, v{AX+2}, {sr(sRB,4)}, 0 offen
                buffer_load_dword v{REC+NSET}, v{AX+2}, {sr(sRD,4)}, 0 idxen
                s_cmp_lg_u64 s[40:41], 0
                s_cbranch_scc1 k2_r2
k2_r2_done:
                s_mov_b64 exec, -1
                """)
                stamp(a,opt,3)
    for k in range(min(la,len(prs))): issue(prs[k])
    for pi in range(len(prs)+1):
        if pi<len(prs):
            last_issued=prs[min(pi+la-1,len(prs)-1)][-1]
            a(f's_waitcnt vmcnt({max(0,2*(min(last_issued,NSET-1)-prs[pi][-1]))})')
            if pi==0: stamp(a,opt,4)
            for it in prs[pi]: a(f'v_mad_u32_u24 v{DL+it}, v{DL+it}, s5, v6')
            for it in prs[pi]: a(f'ds_add_rtn_u32 v{IX+it}, v{DL+it}, v5 offset:4')
        if pi>0:
            nxt=len(prs[pi]) if pi<len(prs) else 0
            a(f's_waitcnt lgkmcnt({nxt})')
            for it in prs[pi-1]: a(f'v_min_u32 v{IX+it}, v{IX+it}, v{DL+it}')
            for it in prs[pi-1]: a(f'ds_write_b32 v{IX+it}, v{REC+it}')
        if pi+la<len(prs): issue(prs[pi+la])
    a(f"""
    s_mul_i32 s8, s{sH}, {TH}
    s_add_u32 s42, s10, s8
    s_addc_u32 s43, s11, 0
    """)
    wl=opt.get('wl',0)
    if wl:
        a(f"""
        s_mul_i32 s4, s3, 12
        s_add_u32 s4, s4, s{sW}
        s_mul_i32 s4, s4, 65
        v_add_lshl_u32 v115, v1, s4, 7
        s_mov_b32 exec_lo, {hex(((1<<wl)-1)&0xffffffff)}
        s_mov_b32 exec_hi, {hex(((1<<wl)-1)>>32)}
        global_load_dword v114, v115, s[42:43]
        s_mov_b64 exec, -1
        """)
    a('k2_au_done:')
    stamp(a,opt,12)
    a(f"""
    s_mov_b32 s{sO+2}, {N*128}
    s_mov_b32 s{sO+3}, 0x20000
    s_mov_b32 s{sT}, s42
    s_or_b32 s{sT+1}, s43, 0x800000                   ; stride 128
    s_mov_b32 s{sT+2}, {0 if opt.get('nogather') else TROWS}
    s_mov_b32 s{sT+3}, 0x20000
    s_mov_b32 s{sK}, {K60}
    s_mov_b32 s{sK+1}, {K60}
    s_mov_b32 s{sE}, {EPS60}
    s_mov_b32 s{sE+1}, {EPS60}
    s_waitcnt lgkmcnt(0)
    s_barrier
    """)

    def outofline(a):
        a("""
k2_r2_over:
        ds_write_b32 v113, v5
        s_branch k2_r2_done
        """)
        a(f"""
k2_t0:
        v_lshrrev_b32 v6, 4, v1
        v_xor_b32 v6, v6, v1
        v_and_b32 v6, 7, v6
        v_lshlrev_b32 v6, 4, v6
        v_lshrrev_b32 v7, 3, v1
        v_lshl_add_u32 v6, v7, 14, v6
        s_and_b32 s9, s{sW}, 3
        s_lshl_b32 s4, s9, 20
        s_lshl_b32 s8, s{sBK}, 7
        s_add_u32 s4, s4, s8
        v_add_u32 v6, s4, v6
        v_xor_b32 v7, 64, v6
        v_add_u32 v7, {8*16384-1024}, v7
        s_lshl_b32 s9, s9, 13
        s_add_u32 s9, s9, {L_X}
        s_mov_b32 m0, s9
        s_mul_i32 s4, s{sH}, {WFH}
        s_add_u32 s4, s4, {WS_WF+4096}
        v_lshl_add_u32 v8, v1, 4, s4
        s_waitcnt lgkmcnt(0)
        s_mov_b32 s{sOF}, s10
        s_mov_b32 s{sOF+1}, s11
        buffer_load_dwordx4 v6, {sr(sX,4)}, 0 offen lds
        s_cmp_eq_u32 s{sW}, 15
        s_cbranch_scc1 k2_t2
        buffer_load_dwordx4 v7, {sr(sX,4)}, 0 offen offset:1024 lds
        v_add_u32 v6, {16*16384-2048}, v6
        v_add_u32 v7, {16*16384-2048}, v7
        buffer_load_dwordx4 v6, {sr(sX,4)}, 0 offen offset:2048 lds
        buffer_load_dwordx4 v7, {sr(sX,4)}, 0 offen offset:3072 lds
k2_t2:
        """)
        nw=opt.get('wpre',4)
        for q in range(nw): a(f'global_load_dwordx4 {vr(16+4*q,4)}, v8, s[10:11] offset:{1024*q-4096}')
        a(f"""
        v_mov_b32 v14, v6
        s_branch k2_t1
k2_au:
        s_waitcnt lgkmcnt(0)
        s_barrier
        s_setprio {opt.get('auprio',3)}
        """)
        for q in range(nw,8): a(f'global_load_dwordx4 {vr(16+4*q,4)}, v8, s[10:11] offset:{1024*q-4096}')
        a(f"""
        s_cmp_eq_u32 s{sW}, 15
        s_cbranch_scc1 k2_t3
        s_add_u32 s4, s9, 4096
        s_mov_b32 m0, s4
        v_add_u32 v14, {16*16384+2048}, v14
        v_add_u32 v7, {16*16384+2048}, v7
        buffer_load_dwordx4 v14, {sr(sX,4)}, 0 offen lds
        buffer_load_dwordx4 v7, {sr(sX,4)}, 0 offen offset:1024 lds
        v_add_u32 v14, {16*16384-2048}, v14
        v_add_u32 v7, {16*16384-2048}, v7
        buffer_load_dwordx4 v14, {sr(sX,4)}, 0 offen offset:2048 lds
        buffer_load_dwordx4 v7, {sr(sX,4)}, 0 offen offset:3072 lds
        s_branch k2_t4
k2_t3:
        v_lshlrev_b32 v9, 2, v2
        s_add_u32 s4, s4, 4096
        v_add_u32 v10, s4, v9
        global_load_dword v10, v10, s[10:11]             ; scaled w_c
k2_t4:
        v_bfe_u32 v11, v1, 1, 3
        v_xor_b32 v11, v11, v3
        v_lshlrev_b32 v11, 4, v11
        v_lshl_add_u32 v11, v2, 7, v11
        v_add_u32 v11, s9, v11
        v_xor_b32 v12, 32, v11
        v_xor_b32 v13, 64, v11
        v_xor_b32 v14, 96, v11
        s_movk_i32 s4, {AS}
        v_mul_u32_u24 v112, s4, v2
        v_lshl_add_u32 v112, v3, 4, v112
        s_and_b32 s8, s{sW}, 3
        s_mul_i32 s4, s8, {64*AS}
        s_add_u32 s4, s4, {L_A}
        v_add_u32 v112, s4, v112
        s_cmp_lt_u32 s8, 3
        s_cselect_b32 s66, -1, 15
        s_mov_b32 s67, s66
        s_mov_b32 s4, {NLOG2E}
        v_mov_b32 v15, 0
        s_waitcnt vmcnt(4)
        s_cbranch_scc1 k2_au1
        s_waitcnt vmcnt(0)
        v_add_u32 v9, {L_WC}, v9
        ds_write_b32 v9, v10
k2_au1:
        """)
        stamp(a,opt,2)
        for t in range(2):
            DA=[64,96][t]
            if t==1:
                a("""
                s_mov_b64 exec, -1
                s_cbranch_scc0 k2_au2
                s_waitcnt vmcnt(0)
                """)
            for s_ in range(4): a(f'ds_read_b128 {vr(48+4*s_,4)}, v{11+s_} offset:{4096*t}')
            for s_ in range(4):
                c = '0' if s_==0 else vr(DA,16)
                a(f's_waitcnt lgkmcnt({3-s_})')
                a(f'v_mfma_f32_32x32x16_bf16 {vr(DA,16)}, {vr(16+4*s_,4)}, {vr(48+4*s_,4)}, {c}')
            for s_ in range(4):
                c = '0' if s_==0 else vr(80,16)
                a(f'v_mfma_f32_32x32x16_bf16 {vr(80,16)}, {vr(32+4*s_,4)}, {vr(48+4*s_,4)}, {c}')
            a(f"""
            s_nop 6
            s_mov_b64 exec, s[66:67]
            """)
            for r in range(16): a(f'v_mul_f32 v{DA+r}, s4, v{DA+r}')
            for g in range(4): a(f'ds_write_b128 v112, {vr(80+4*g,4)} offset:{32*g+L_U-L_A+32*AS*t}')
            for r in range(0,16,2): a(f'v_max3_f32 v15, |v{DA+r}|, |v{DA+r+1}|, v15')
            for r in range(16): a(f'v_add_f32 v{48+r}, {hex(f2u(-60.0))}, v{DA+r}')
            for r in range(16): a(f'v_exp_f32 v{48+r}, v{48+r}')
            a('s_nop 0')
            for g in range(4): a(f'ds_write_b128 v112, {vr(48+4*g,4)} offset:{32*g+32*AS*t}')
            if t==0: stamp(a,opt,3)
        a(f"""
k2_au2:
        s_mul_i32 s8, s{sH}, {TH}
        s_add_u32 s42, s10, s8
        s_addc_u32 s43, s11, 0
        v_cmp_lt_f32 vcc, {hex(f2u(60.0))}, v15
        s_cbranch_vccz k2_au_done
        ds_write_b32 v113, v5 offset:4
        s_branch k2_au_done
        """)
    stamp(a,opt,5)
    a(f'''
    s_cmp_lg_u32 s{sW}, 15
    s_cbranch_scc1 k2_nosort
    s_setprio 3
    v_mul_u32_u24 v9, s5, v1
    ds_read_b32 v12, v9 offset:{RB+CAP*4+4}
    ds_read_b32 v13, v9 offset:{RB+CAP*4+4+64*RS}
    ds_read_b32 v14, v9 offset:{RB+CAP*4+4+128*RS}
    s_mov_b64 exec, 15
    ds_read_b32 v15, v9 offset:{RB+CAP*4+4+192*RS}
    s_mov_b64 exec, -1
    v_lshlrev_b32 v11, 2, v1
    v_mov_b32 v10, {63*4}
    v_mov_b32 v30, 1
    v_mov_b32 v32, 0
    ''')
    for k in range(4): a(f'v_add_u32 v{36+k}, {RB-4+64*k*RS}, v9')
    for k in range(4):
        if k==3: a('s_mov_b64 exec, 15')
        a(f'''
        s_waitcnt lgkmcnt(3)
        v_sub_u32 v{12+k}, v{12+k}, v{36+k}              ; 4*deg + 4
        v_max_u32 v32, v32, v{12+k}
        v_min_u32 v{12+k}, {CAP*4+4}, v{12+k}
        v_lshrrev_b32 v{12+k}, 3, v{12+k}                ; p
        v_lshlrev_b32 v{16+k}, 2, v{12+k}
        v_sub_u32 v{16+k}, v10, v{16+k}
        ds_add_rtn_u32 v{24+k}, v{16+k}, v30 offset:{L_CH}
        ''')
    a(f'''
    s_mov_b64 exec, -1
    ds_read_b32 v28, v11 offset:{L_CH}
    v_cmp_lt_u32 vcc, {CAP*4+4}, v32
    s_cbranch_vccz k2_s1
    ds_write_b32 v113, v5
k2_s1:
    ''')
    for k in range(4):
        a(f'''
        v_add_u32 v{33+k}, {64*k}, v1
        v_lshl_or_b32 v{33+k}, v{12+k}, 16, v{33+k}
        ''')
    a(f'''
    s_waitcnt lgkmcnt(0)
    v_mov_b32 v29, v28
    ''')
    scan64(a,29)
    a('v_sub_u32 v29, v29, v28')
    for k in range(4): a(f'ds_bpermute_b32 v{20+k}, v{16+k}, v29')
    for k in range(4):
        if k==3: a('s_mov_b64 exec, 15')
        a(f'''
        s_waitcnt lgkmcnt(3)
        v_add_lshl_u32 v{20+k}, v{20+k}, v{24+k}, 2
        ds_write_b32 v{20+k}, v{33+k} offset:{L_PERM}
        ''')
    a(f'''
    s_mov_b64 exec, -1
k2_nosort:
    v_and_b32 v51, 7, v1
    v_lshlrev_b32 v51, 4, v51
    v_add_u32 v82, {L_WC}, v51
    ds_read_b128 v[4:7], v82
    s_mov_b32 s65, 0xffff0000
    v_mov_b32 v84, {RB}
    v_lshrrev_b32 v82, 1, v51
    s_lshl_b32 s4, s{sH}, 6
    v_add_u32 v82, s4, v82                              ; 64*half + 8*j
    v_mov_b32 v53, v51
    v_mov_b32 v89, v51
    v_mov_b32 v91, v51
    v_mov_b32 v93, v51
    v_mov_b32 v95, v51
    v_add_u32 v81, {L_A}, v51
    v_mov_b32 v48, 0
    v_mov_b32 v49, 0
    v_lshrrev_b32 v83, 3, v1                            ; slot
    s_lshl_b32 s66, s{sBK}, 7
    v_add_u32 v82, s66, v82
    s_movk_i32 s66, {AS}
    s_mov_b32 s54, 0                                    ; pass
    s_lshl_b32 s4, s{sW}, 5
    s_add_u32 s4, s4, {L_PERM+16}
    v_lshl_add_u32 v80, v83, 2, s4
    s_cmp_lt_u32 s{sW}, 12
    s_cbranch_scc1 k2_c1
    s_lshl_b32 s4, s{sW}, 2
    s_add_u32 s4, s4, {L_PERM-48}
    v_mov_b32 v80, s4
    s_mov_b32 s{sE}, {EPS60_8}
    s_mov_b32 s{sE+1}, {EPS60_8}
k2_c1:
    s_setprio 3
    s_waitcnt lgkmcnt(0)
    s_barrier
    ''')
    stamp(a,opt,6)
    stamp(a,opt,8,True)
    a(f'''
    ds_read_b64 v[86:87], v113
    ds_read_b32 v80, v80
    s_waitcnt lgkmcnt(1)
    v_or_b32 v85, v86, v87
    v_readfirstlane_b32 s64, v87                        ; modeB
    v_cmp_ne_u32 vcc, 0, v85
    s_cbranch_vccnz k2_mb
    s_branch k2_group1
k2_group:
    ds_read_b32 v80, v80
k2_group1:
    s_waitcnt lgkmcnt(0)
    v_readfirstlane_b32 s40, v80
    v_and_b32 v80, 0xffff, v80
    v_mad_u32_u24 v54, s5, v80, v84
    s_lshr_b32 s40, s40, 16
    s_cmp_lt_u32 s{sW}, 12
    s_cbranch_scc1 k2_go
    s_add_u32 s40, s40, 7
    s_lshr_b32 s40, s40, 3
    s_max_u32 s40, s40, {PD}
    s_lshl_b32 s41, s40, 3
    v_mad_u32_u24 v54, v83, s41, v54
k2_go:
    ''')
    AP=[50,52,88,90,92,94]
    for k in range(2*PD): a(f'ds_read_u16 v{AP[k]}, v54 offset:{4*k}')
    a(f'''
    v_mad_u32_u24 v55, v80, s66, v81                    ; A row + 16*j
    v_lshl_add_u32 v58, v80, 14, v82
    ds_read_b128 v[8:11], v55
    buffer_load_dwordx2 v[56:57], v58, {sr(sX,4)}, 0 offen
    s_max_u32 s40, s40, {PD}                            ; L
    ''')
    if NS==3:
        a('''
        s_mul_i32 s4, s40, 43691
        s_lshr_b32 s4, s4, 17
        s_mul_i32 s41, s4, 3
        s_sub_u32 s67, s40, s41
        s_mov_b32 s40, s4
        ''')
    else:
        a('''
        s_and_b32 s67, s40, 3
        s_lshr_b32 s40, s40, 2
        ''')
    a(f'''
    s_cmp_gt_u32 s40, {opt.get('thr',2)}
    s_cselect_b32 s41, {opt.get('thr',2)}, 0
    s_cmp_eq_u32 s54, 0
    s_cselect_b32 s41, 0, s41
    v_mov_b64 v[16:17], {sr(sE,2)}
    v_mov_b64 v[18:19], {sr(sE,2)}
    v_mov_b64 v[20:21], 0
    v_mov_b64 v[22:23], 0
    s_waitcnt lgkmcnt(1)
    ''')
    for u in range(1,NS):
        a(f'''
        s_cmp_eq_u32 s67, {PD-u}
        s_cbranch_scc1 k2_e{u}
        ''')
    for u in range(NS):
        if u: a(f'k2_e{u}:')
        for k in range(PD):
            r=RSET[(u+k)%NS]
            a(f'''
            buffer_load_dwordx4 {vr(r,4)}, {vr(AP[2*k],2)}, {sr(sT,4)}, 0 idxen offen
            buffer_load_dwordx4 {vr(r+4,4)}, {vr(AP[2*k+1],2)}, {sr(sT,4)}, 0 idxen offen
            ''')
        a(f'''
        ds_read_u16 v50, v54 offset:{8*PD}
        ds_read_u16 v52, v54 offset:{8*PD+4}
        ds_read_u16_d16_hi v48, v54 offset:2
        ds_read_u16_d16_hi v49, v54 offset:6
        ''')
        if u: a(f'v_subrev_u32 v54, {8*u}, v54')
        if u==0:
            a('''
            s_cmp_eq_u32 s40, 0
            s_cbranch_scc1 k2_e0t
            ''')
        a(f'''
        s_cmp_lg_u32 s64, 0
        s_cbranch_scc1 k2_loopB{u}
        s_branch k2_loopA{u}
        ''')
    a('''
k2_e0t:
    s_cmp_lg_u32 s64, 0
    s_cbranch_scc1 k2_tailB
    s_branch k2_tailA
    ''')
    mainloop(a, False, opt)
    a(f'''
k2_fin:
    ds_read_b128 v[64:67], v55 offset:{L_U-L_A}
    s_cmp_lt_u32 s{sW}, 12
    s_cbranch_scc0 k2_red
k2_epi:
    v_rcp_f32 v16, v16
    v_rcp_f32 v17, v17
    v_rcp_f32 v18, v18
    v_rcp_f32 v19, v19
    v_lshlrev_b32 v68, 16, v56
    v_and_b32 v69, s65, v56
    v_lshlrev_b32 v70, 16, v57
    v_and_b32 v71, s65, v57
    s_movk_i32 s4, 0x207
    s_waitcnt lgkmcnt(0)
    v_pk_fma_f32 v[64:65], v[20:21], v[16:17], v[64:65]
    v_pk_fma_f32 v[66:67], v[22:23], v[18:19], v[66:67]
    s_sub_u32 s41, 23, s{sW}
    v_pk_add_f32 v[72:73], v[64:65], v[66:67]
    v_max_f32 v64, 0, v64
    v_max_f32 v65, 0, v65
    v_add_f32 v72, v72, v73
    v_max_f32 v66, 0, v66
    v_max_f32 v67, 0, v67
    v_cmp_class_f32_e64 vcc, v72, s4
    v_pk_add_f32 v[64:65], v[64:65], v[68:69]
    v_pk_add_f32 v[66:67], v[66:67], v[70:71]
    s_lshl_b32 s41, s41, 5
    v_cvt_pk_bf16_f32 v64, v64, v65
    v_cvt_pk_bf16_f32 v65, v66, v67
    s_add_u32 s41, s41, {L_PERM+16}
    buffer_store_dwordx2 v[64:65], v58, {sr(sO,4)}, 0 offen {opt.get('ostore','')}
    s_cbranch_vccz k2_ok
    v_mov_b32 v70, 1
    ds_write_b32 v113, v70
k2_ok:
    s_cmp_ge_u32 s{sW}, 12
    s_cbranch_scc1 k2_done
    s_cmp_lg_u32 s54, 0
    s_cbranch_scc1 k2_done
    s_mov_b32 s54, 1
    s_setprio 2
    v_lshl_add_u32 v80, v83, 2, s41
    s_branch k2_group
k2_done:
    s_waitcnt lgkmcnt(0)
    ''')
    stamp(a,opt,7)
    stamp(a,opt,9,True)
    a(f'''
    s_barrier
    ds_read_b32 v85, v113
    s_waitcnt lgkmcnt(0)
    v_readfirstlane_b32 s4, v85
    s_cmp_lg_u32 s4, 0
    s_cbranch_scc1 k2_slow
    ''')
    stamp_out(a,opt,range(13),'s[10:11]',1)
    a('''
k2_end:
    s_endpgm
    ''')
    a(f'''
k2_mb:
    s_cmp_eq_u32 s64, 0
    s_cbranch_scc1 k2_done
    s_cmp_lt_u32 s{sW}, 12
    s_cbranch_scc1 k2_mb1
    s_cmp_lt_u32 s{sW}, 15
    s_cselect_b32 exec_lo, -1, 15
    s_cselect_b32 exec_hi, -1, 15
    ds_write_b128 v112, v[64:67]
    ds_write_b128 v112, v[68:71] offset:32
    ds_write_b128 v112, v[72:75] offset:64
    ds_write_b128 v112, v[76:79] offset:96
    s_mov_b64 exec, -1
    s_cbranch_scc0 k2_mb1
    ds_write_b128 v112, v[96:99] offset:{32*AS}
    ds_write_b128 v112, v[100:103] offset:{32*AS+32}
    ds_write_b128 v112, v[104:107] offset:{32*AS+64}
    ds_write_b128 v112, v[108:111] offset:{32*AS+96}
k2_mb1:
    s_waitcnt lgkmcnt(0)
    s_barrier
    v_cmp_ne_u32 vcc, 0, v86
    s_cbranch_vccnz k2_done
    s_branch k2_group1
k2_red:
    s_nop 1
    ''')
    for r in range(16,24): a(f'v_add_f32_dpp v{r}, v{r}, v{r} row_ror:8 row_mask:0xf bank_mask:0xf')
    for op in ('v_permlane16_swap_b32','v_permlane32_swap_b32'):
        for r in range(8): a(f'v_mov_b32 v{68+r}, v{16+r}')
        a('s_nop 1')
        for r in range(8): a(f'{op} v{68+r}, v{16+r}')
        for r in range(8): a(f'v_add_f32 v{16+r}, v{16+r}, v{68+r}')
    a('s_branch k2_epi')
    outofline(a)
    mainloop(a, True, opt)
    a('s_branch k2_fin')
    slow(a,opt)

def slow(a,opt):
    a(f'''
k2_slow:
    s_load_dwordx2 s[56:57], s[0:1], 40               ; w_b
    s_load_dwordx2 s[58:59], s[0:1], 64               ; w_v
    s_load_dwordx2 s[6:7], s[0:1], 48                 ; w_c
    s_add_u32 s{sOF}, s10, {WS_OFFS}
    s_addc_u32 s{sOF+1}, s11, 0
    s_mov_b32 s{sOF+2}, {128*1024}
    s_mov_b32 s{sOF+3}, 0x20000
    s_waitcnt vmcnt(0) lgkmcnt(0)
    s_barrier
    v_mov_b32 v116, 0
    v_mov_b32 v117, 0
    v_mov_b32 v118, 0
    v_mov_b32 v119, 0
    v_lshlrev_b32 v120, 4, v0
    ds_write_b128 v120, v[116:119]
    ds_write_b128 v120, v[116:119] offset:16384
    ds_write_b128 v120, v[116:119] offset:32768
    ds_write_b128 v120, v[116:119] offset:49152
    v_and_b32 v1, 63, v0
    v_and_b32 v2, 31, v1
    v_lshrrev_b32 v3, 5, v1
    v_cmp_eq_u32 vcc, 1, v3
    s_mov_b64 s[60:61], vcc
    v_mov_b32 v10, s56
    v_mov_b32 v11, s58
    v_cndmask_b32 v10, v10, v11, vcc
    v_mov_b32 v11, s57
    v_mov_b32 v12, s59
    v_cndmask_b32 v11, v11, v12, vcc
    s_lshl_b32 s4, s{sH}, 6
    v_lshl_add_u32 v8, v2, 1, s4                      ; 2*c
    v_add_u32 v9, 4096, v8
    v_add_co_u32 v10, vcc, v10, v9
    s_nop 1
    v_addc_co_u32 v11, vcc, 0, v11, vcc
    ''')
    for k in range(64):
        a(f'global_load_ushort v{32+k}, v[10:11], off offset:{k*128-4096}')
        if k==31: a('s_waitcnt vmcnt(0)')
    a(f'''
    global_load_ushort v13, v8, s[6:7]
    s_waitcnt vmcnt(0)
    ''')
    for k in range(64): a(f'v_lshlrev_b32 v{32+k}, 16, v{32+k}')
    a(f'''
    v_lshlrev_b32 v13, 16, v13                        ; wc[c]
    v_lshlrev_b32 v14, 2, v1                          ; lane*4
    v_lshlrev_b32 v15, 2, v2
    v_add_u32 v15, {L_A}, v15
    s_mov_b32 s62, {NLOG2E}
    s_mov_b32 s63, 0                                  ; chunk
    s_waitcnt lgkmcnt(0)
    s_barrier
k2_sl_chunk:
    s_and_b32 s4, s63, 7
    s_lshl_b32 s4, s4, 7
    s_lshr_b32 s5, s63, 3
    s_lshl_b32 s5, s5, 2
    s_add_u32 s4, s4, s5
    s_lshl_b32 s5, s{sBK}, 10
    s_add_u32 s4, s4, s5
    s_add_u32 s5, s4, 1024
    s_buffer_load_dword s48, {sr(sOF,4)}, s4
    s_buffer_load_dword s49, {sr(sOF,4)}, s5
    s_add_u32 s5, s63, 1
    s_mul_i32 s5, s5, {CH}
    s_waitcnt lgkmcnt(0)
    s_and_b32 s48, s48, 0xffffff
    s_and_b32 s49, s49, 0xffffff
    s_cmp_eq_u32 s{sBK}, 127
    s_cselect_b32 s49, s5, s49
k2_sl_blk:
    s_cmp_ge_u32 s48, s49
    s_cbranch_scc1 k2_sl_next
    v_add_u32 v18, s48, v1
    buffer_load_ubyte v16, v18, {sr(sRB,4)}, 0 offen
    buffer_load_dword v17, v18, {sr(sRD,4)}, 0 idxen
    v_cmp_gt_u32 vcc, s49, v18
    s_mov_b64 s[50:51], vcc
    s_waitcnt vmcnt(0)
    v_and_b32 v18, 15, v16
    v_cmp_eq_u32 vcc, s{sW}, v18
    s_and_b64 s[50:51], s[50:51], vcc
k2_sl_edge:
    s_cmp_eq_u64 s[50:51], 0
    s_cbranch_scc1 k2_sl_bend
    s_ff1_i32_b64 s4, s[50:51]
    s_bitset0_b64 s[50:51], s4
    v_readlane_b32 s52, v16, s4                       ; dl
    v_readlane_b32 s53, v17, s4                       ; rec
    s_nop 3
    s_and_b32 s4, s53, 0xffff
    s_lshl_b32 s4, s4, 7
    s_add_u32 s5, s4, 64
    s_and_b32 s53, s53, 0xffff0000                    ; e
    s_buffer_load_dwordx16 s[72:87], {sr(sX,4)}, s4
    s_mul_i32 s40, s52, {AS}
    v_add_u32 v19, s40, v15
    ds_read_b32 v20, v19
    s_lshl_b32 s40, s52, 8
    v_add_u32 v21, s40, v14
    ds_read_b32 v22, v21                              ; accumulator
    v_mov_b32 v23, 0
    s_waitcnt lgkmcnt(0)
    ''')
    for hlf in range(2):
        for i in range(16):
            k=32+hlf*32+2*i
            a(f'''
            s_lshl_b32 s40, s{72+i}, 16
            s_and_b32 s41, s{72+i}, 0xffff0000
            v_fmac_f32 v23, s40, v{k}
            v_fmac_f32 v23, s41, v{k+1}
            ''')
        if hlf==0:
            a(f'''
            s_buffer_load_dwordx16 s[72:87], {sr(sX,4)}, s5
            s_waitcnt lgkmcnt(0)
            ''')
    a(f'''
    s_cmp_lg_u32 s64, 0
    s_cbranch_scc1 k2_sl_raw
    v_log_f32 v20, v20
    s_nop 0
    v_add_f32 v20, {hex(f2u(60.0))}, v20
k2_sl_raw:
    v_fma_f32 v24, s53, v13, v23
    v_fma_f32 v24, v24, s62, v20
    v_exp_f32 v24, v24
    s_nop 0
    v_add_f32 v24, 1.0, v24
    v_rcp_f32 v24, v24
    s_nop 0
    v_mov_b32 v25, v24
    s_nop 1
    v_permlane32_swap_b32 v24, v25
    v_cndmask_b32 v23, 1.0, v23, s[60:61]
    v_fmac_f32 v22, v24, v23
    ds_write_b32 v21, v22
    s_waitcnt lgkmcnt(0)
    s_branch k2_sl_edge
k2_sl_bend:
    s_add_u32 s48, s48, 64
    s_branch k2_sl_blk
k2_sl_next:
    s_add_u32 s63, s63, 1
    s_cmp_lt_u32 s63, {NCH}
    s_cbranch_scc1 k2_sl_chunk
    ; outputs
    s_mov_b32 s52, s{sW}
    s_lshl_b32 s53, s{sBK}, 7
k2_sl_out:
    s_lshl_b32 s40, s52, 8
    v_add_u32 v21, s40, v14
    ds_read_b32 v22, v21
    s_mul_i32 s40, s52, {AS}
    v_add_u32 v19, s40, v15
    ds_read_b32 v20, v19 offset:{L_U-L_A}
    s_lshl_b32 s40, s52, 14
    s_add_u32 s40, s40, s53
    v_add_u32 v26, s40, v8
    buffer_load_ushort v27, v26, {sr(sX,4)}, 0 offen
    s_waitcnt vmcnt(0) lgkmcnt(0)
    v_mov_b32 v25, v22
    s_nop 1
    v_permlane32_swap_b32 v22, v25
    v_lshlrev_b32 v27, 16, v27
    v_add_f32 v22, {hex(f2u(1e-6))}, v22
    v_rcp_f32 v22, v22
    s_nop 0
    v_fma_f32 v20, v25, v22, v20
    v_mul_f32 v28, 0, v20
    v_cmp_lt_f32 vcc, 0, v20
    s_nop 1
    v_cndmask_b32 v20, v28, v20, vcc
    v_add_f32 v20, v20, v27
    v_cvt_pk_bf16_f32 v20, v20, v20
    buffer_store_short v20, v26, {sr(sO,4)}, 0 offen
    s_add_u32 s52, s52, 16
    s_cmp_lt_u32 s52, 196
    s_cbranch_scc1 k2_sl_out
    s_endpgm
    ''')

HEADER = open('standalone__edge_featured_mpnn_gatedgcn__graph.s.ref').read().split('; Override launch')[0]

def desc(name, vg, sg):
    return f'''.p2align 6
.amdhsa_kernel {name}
  .amdhsa_next_free_vgpr {vg}
  .amdhsa_next_free_sgpr {sg}
  .amdhsa_accum_offset {(vg+3)//4*4}
  .amdhsa_group_segment_fixed_size 0
  .amdhsa_kernarg_size 96
  .amdhsa_user_sgpr_count 2
  .amdhsa_user_sgpr_kernarg_segment_ptr 1
  .amdhsa_system_sgpr_workgroup_id_x 1
.end_amdhsa_kernel
'''

def build(opt):
    out = HEADER
    X='; @launch kernel=k3_kernel grid=(256,1,1) block=(64,1,1) lds=0\n'
    out += X*opt.get('pre',0)
    out += f'; @launch kernel=k1_kernel grid=({K1_GRID},1,1) block=(512,1,1) lds={L1_SIZE}\n'
    out += X*opt.get('mid',0)
    out += f'; @launch kernel=k2_kernel grid=(256,1,1) block=(1024,1,1) lds={L2_SIZE}\n'
    out += '.amdgcn_target "amdgcn-amd-amdhsa--gfx950"\n.text\n'
    for name, fn in (('k1_kernel',k1),('k2_kernel',k2)):
        a=Asm(); fn(a,opt)
        out += f'.globl {name}\n.p2align 8\n.type {name},@function\n' + a.text()
    ex = opt.get('pre') or opt.get('mid')
    if ex: out += '.globl k3_kernel\n.p2align 8\n.type k3_kernel,@function\nk3_kernel:\n    s_endpgm\n'
    out += '.section .rodata,"a"\n'
    if ex: out += desc('k3_kernel', 8, 16)
    ts = opt.get('ts')
    out += desc('k1_kernel', 128 if ts else 96, 96 if ts else 40)
    out += desc('k2_kernel', 128, 100 if ts else 96)
    return out

if __name__=='__main__':
    opt={}
    outp='standalone__edge_featured_mpnn_gatedgcn__graph.s'
    for x in sys.argv[1:]:
        k,v=x.split('=',1)
        if k=='o': outp=v
        else: opt[k]= int(v) if v.lstrip('-').isdigit() else v
    open(outp,'w').write(build(opt))
```
